```python
import torch

def _softmax(x, axis=-1):
    return torch.softmax(x, dim=axis)
def _gelu(x):
    return torch.nn.functional.gelu(x, approximate="tanh")
def _silu(x):
    return torch.nn.functional.silu(x)
def _sigmoid(x):
    return torch.sigmoid(x)
def _layernorm(x, axis=-1, eps=1e-5):
    m = x.mean(dim=axis, keepdim=True)
    v = x.var(dim=axis, keepdim=True, unbiased=False)
    return (x - m) / torch.sqrt(v + eps)
def _scatter_add(tgt, idx, src, axis=0):
    return tgt.clone().index_add_(axis, idx, src)
def _segment_sum(src, seg, n):
    out = torch.zeros((n,) + src.shape[1:], dtype=src.dtype)
    return out.index_add_(0, seg, src)
def _pad(x, pw):
    flat = tuple(v for pair in reversed(pw) for v in pair)
    return torch.nn.functional.pad(x, flat)

kernel_name = 'interleave_layers__sliding_block_cached__sliding_block_cached__decode'

def setup_inputs():

    _w = (lambda a: (lambda t: t.to(torch.bfloat16) if t.is_floating_point() else t)(torch.as_tensor(a)))
    def _A_setup():
        B, Sq, D = 2, 1, 576
        Hq, Hkv, Sk, Dh = 32, 16, 4096, 128
        assert Hq % Hkv == 0, (Hq, Hkv)
        return {
            "x": _w((lambda *s: torch.randn(*s, dtype=torch.bfloat16) * 0.05)(B, Sq, D)),
            "k_cache": _w((lambda *s: torch.randn(*s, dtype=torch.bfloat16) * 0.8)(B, Hkv, Sk, Dh)),
            "v_cache": _w((lambda *s: torch.randn(*s, dtype=torch.bfloat16) * 1.6)(B, Hkv, Sk, Dh)),
            "wq": _w((lambda *s: torch.randn(*s, dtype=torch.bfloat16) * 0.8)(D, Hq * Dh) * (D ** -0.5)),
            "wo": _w((lambda *s: torch.randn(*s, dtype=torch.bfloat16) * 1.6)(Hq * Dh, D) * ((Hq * Dh) ** -0.5)),
        }
    _A_in = _A_setup()

    def _B_setup():
        B, Sq, D = 2, 1, 576
        Hq, Hkv, Sk, Dh = 32, 16, 4096, 128
        assert Hq % Hkv == 0, (Hq, Hkv)
        return {
            "x": _w((lambda *s: torch.randn(*s, dtype=torch.bfloat16) * 0.05)(B, Sq, D)),
            "k_cache": _w((lambda *s: torch.randn(*s, dtype=torch.bfloat16) * 3.2)(B, Hkv, Sk, Dh)),
            "v_cache": _w((lambda *s: torch.randn(*s, dtype=torch.bfloat16) * 0.4)(B, Hkv, Sk, Dh)),
            "wq": _w((lambda *s: torch.randn(*s, dtype=torch.bfloat16) * 3.2)(D, Hq * Dh) * (D ** -0.5)),
            "wo": _w((lambda *s: torch.randn(*s, dtype=torch.bfloat16) * 0.4)(Hq * Dh, D) * ((Hq * Dh) ** -0.5)),
        }
    _B_in = _B_setup()

    return {
        "A_x": _A_in["x"],
        "A_k_cache": _A_in["k_cache"],
        "A_v_cache": _A_in["v_cache"],
        "A_wq": _A_in["wq"],
        "A_wo": _A_in["wo"],
        "B_x": _B_in["x"],
        "B_k_cache": _B_in["k_cache"],
        "B_v_cache": _B_in["v_cache"],
        "B_wq": _B_in["wq"],
        "B_wo": _B_in["wo"],
    }

def reference(A_x, A_k_cache, A_v_cache, A_wq, A_wo, B_x, B_k_cache, B_v_cache, B_wq, B_wo):
    def _A_ref(x, k_cache, v_cache, wq, wo):
        B, Sq, D = x.shape
        Hq, Dh = 32, 128
        Hkv, Sk = k_cache.shape[1], k_cache.shape[2]
        W = min(4096, max(256, Sk // 4))
        rep = Hq // Hkv
        q = (lambda x, *d: x.permute(*d))((x @ wq).reshape(B, Sq, Hq, Dh), 0, 2, 1, 3)
        k = (lambda x, n, axis: torch.repeat_interleave(x, n, dim=axis))(k_cache[:, :, Sk - W:, :], rep, axis=1)
        v = (lambda x, n, axis: torch.repeat_interleave(x, n, dim=axis))(v_cache[:, :, Sk - W:, :], rep, axis=1)
        scores = torch.einsum("bhqd,bhkd->bhqk", q, k) * (Dh ** -0.5)
        p = _softmax(scores, axis=-1)
        o = torch.einsum("bhqk,bhkd->bhqd", p, v)
        return (lambda x, *d: x.permute(*d))(o, 0, 2, 1, 3).reshape(B, Sq, Hq * Dh) @ wo

    def _B_ref(x, k_cache, v_cache, wq, wo):
        B, Sq, D = x.shape
        Hq, Dh = 32, 128
        Hkv, Sk = k_cache.shape[1], k_cache.shape[2]
        W = min(4096, max(256, Sk // 4))
        rep = Hq // Hkv
        q = (lambda x, *d: x.permute(*d))((x @ wq).reshape(B, Sq, Hq, Dh), 0, 2, 1, 3)
        k = (lambda x, n, axis: torch.repeat_interleave(x, n, dim=axis))(k_cache[:, :, Sk - W:, :], rep, axis=1)
        v = (lambda x, n, axis: torch.repeat_interleave(x, n, dim=axis))(v_cache[:, :, Sk - W:, :], rep, axis=1)
        scores = torch.einsum("bhqd,bhkd->bhqk", q, k) * (Dh ** -0.5)
        p = _softmax(scores, axis=-1)
        o = torch.einsum("bhqk,bhkd->bhqd", p, v)
        return (lambda x, *d: x.permute(*d))(o, 0, 2, 1, 3).reshape(B, Sq, Hq * Dh) @ wo

    x = A_x
    x = x + _A_ref(_layernorm(x, axis=-1), A_k_cache, A_v_cache, A_wq, A_wo)
    x = x + _B_ref(_layernorm(x, axis=-1), B_k_cache, B_v_cache, B_wq, B_wo)
    x = x + _A_ref(_layernorm(x, axis=-1), A_k_cache, A_v_cache, A_wq, A_wo)
    x = x + _B_ref(_layernorm(x, axis=-1), B_k_cache, B_v_cache, B_wq, B_wo)
    return x
```

```python
import re
TRANS = ("v_exp_f32", "v_log_f32", "v_rcp_f32", "v_rsq_f32", "v_sqrt_f32", "v_sin_f32", "v_cos_f32")

def regs_of(op):
    op = op.strip()
    op = op.lstrip("-").strip("|")
    m = re.fullmatch(r"([vsa])\[(\d+):(\d+)\]", op)
    if m: return {(m.group(1), i) for i in range(int(m.group(2)), int(m.group(3)) + 1)}
    m = re.fullmatch(r"([vsa])(\d+)", op)
    if m: return {(m.group(1), int(m.group(2)))}
    if op == "vcc": return {("s", "vcc")}
    if op in ("vcc_lo", "vcc_hi"): return {("s", "vcc")}
    if op in ("exec", "exec_lo", "exec_hi"): return {("s", "exec")}
    if op == "m0": return {("s", "m0")}
    return set()

class Ins:
    def __init__(self, text):
        self.text = text
        t = text.split(";")[0].strip()
        self.label = t[:-1] if t.endswith(":") else None
        self.directive = t.startswith(".") or t == ""
        self.w = set(); self.r = set(); self.srcC = set(); self.ab = set()
        self.kind = None; self.dpp = False; self.states = 0; self.target = None; self.mn = ""
        if self.label or self.directive: return
        parts = t.split(None, 1)
        mn = parts[0]; self.mn = mn
        rest = parts[1] if len(parts) > 1 else ""
        ops = []; cur = ""; d = 0
        for ch in rest:
            if ch in "[(": d += 1
            if ch in "])": d -= 1
            if ch == "," and d == 0: ops.append(cur); cur = ""
            else: cur += ch
        ops.append(cur)
        last = ops[-1].strip().split(None, 1)
        mods = last[1] if len(last) > 1 else ""
        ops[-1] = last[0] if last else ""
        self.mods = mods
        R = [regs_of(o) for o in ops]
        self.states = 1
        if mn == "s_nop": self.states = int(ops[0]) + 1; self.kind = "salu"; return
        if mn.startswith("v_mfma"):
            self.kind = "mfma"; self.w = R[0]; self.ab = R[1] | R[2]; self.srcC = R[3]; self.r = self.ab | self.srcC
        elif mn.startswith("v_"):
            self.kind = "valu"
            self.dpp = mn.endswith("_dpp")
            if mn.startswith("v_permlane"):
                self.w = R[0] | R[1]; self.r = R[0] | R[1]
            else:
                self.w = R[0]; self.r = set().union(*R[1:]) if len(R) > 1 else set()
                if mn.startswith(("v_fmac", "v_mac", "v_writelane", "v_pk_fmac")) or self.dpp: self.r |= R[0]
                if mn.startswith("v_cndmask") and len(ops) == 3: self.r |= {("s", "vcc")}
        elif mn.startswith("buffer_load"):
            self.kind = "vmem"
            if " lds" in " " + mods: self.r = set().union(*R) | {("s", "m0")}; self.dma = True
            else: self.w = R[0]; self.r = set().union(*R[1:])
        elif mn.startswith(("buffer_store", "buffer_atomic")):
            self.kind = "vmem"; self.r = set().union(*R); self.sdata = R[0] if len(R[0]) >= 3 else set()
        elif mn.startswith("ds_read"):
            self.kind = "ds"; self.w = R[0]; self.r = set().union(*R[1:])
        elif mn.startswith("ds_"):
            self.kind = "ds"; self.r = set().union(*R)
        elif mn.startswith("s_"):
            self.kind = "salu"
            if mn.startswith(("s_cbranch", "s_branch")): self.target = ops[0].strip()
            elif mn.startswith(("s_cmp", "s_waitcnt", "s_barrier", "s_sleep", "s_setprio", "s_endpgm", "s_bitcmp")): self.r = set().union(*R)
            else: self.w = R[0]; self.r = set().union(*R[1:]) if len(R) > 1 else set()
        else:
            raise ValueError("unknown ins " + text)

def need(p, c):
    n = 0
    vw = {x for x in p.w if x[0] in "va"}
    sw = {x for x in p.w if x[0] == "s"}
    if p.kind == "valu":
        if c.kind == "valu" and (c.dpp or c.mn.startswith("v_permlane")) and vw & c.r: n = max(n, 2)
        if c.kind == "mfma" and vw & c.r: n = max(n, 2)
        if c.mn.startswith(("v_readfirstlane", "v_readlane")) and vw & c.r: n = max(n, 1)
        if p.mn.startswith(TRANS) and c.kind in ("valu",) and vw & c.r: n = max(n, 1)
        if p.mn.startswith(TRANS) and c.kind in ("vmem", "ds") and vw & c.r: n = max(n, 1)
        if sw:
            if c.kind == "valu" and sw & c.r: n = max(n, 4 if c.mn.startswith(("v_readlane", "v_writelane")) else 2)
            if c.kind == "vmem" and sw & c.r: n = max(n, 5)
    if p.kind == "mfma":
        if c.kind == "mfma":
            if p.w & c.ab: n = max(n, 8)
            if p.w & c.srcC and p.w != c.srcC: n = max(n, 6)
            if p.w & c.w and not (p.w == c.srcC): n = max(n, 6)
        elif c.kind in ("valu", "vmem", "ds"):
            if p.w & (c.r | c.w): n = max(n, 8)
            if c.kind == "valu" and p.srcC & c.w: n = max(n, 3)
    if p.kind == "vmem" and getattr(p, "sdata", None):
        if p.sdata & c.w: n = max(n, 2)
    if p.kind == "salu" and ("s", "m0") in p.w and getattr(c, "dma", False): n = max(n, 1)
    return n

def pad_needed(prev, c):
    dist = 0; req = 0
    for p in reversed(prev):
        if p.states == 0: continue
        k = need(p, c)
        if k - dist > req: req = k - dist
        dist += p.states
        if dist >= 8: break
    return req

def finalize(lines):
    ins = [Ins(l) for l in lines]
    out = []
    for c in ins:
        if c.states:
            prev = []
            for p in reversed(out):
                if p.mn in ("s_branch", "s_endpgm"): break
                prev.append(p)
                if len(prev) > 24: break
            prev.reverse()
            k = pad_needed(prev, c)
            if k > 0: out.append(Ins(f"s_nop {k-1}"))
        out.append(c)
    lab = {c.label: i for i, c in enumerate(out) if c.label}
    for i, c in enumerate(out):
        if c.target:
            prev = []
            for p in reversed(out[:i + 1]):
                if p is not c and p.mn in ("s_branch", "s_endpgm"): break
                prev.append(p)
                if len(prev) > 24: break
            prev.reverse()
            j = lab[c.target]; seq = list(prev); tot = 0; hops = 0
            while j < len(out) and tot < 8:
                d = out[j]
                if d.states:
                    if pad_needed(seq, d) > 0: raise ValueError(f"hazard across branch '{c.text}' at '{d.text}'")
                    seq.append(d); tot += d.states
                    if d.mn == "s_endpgm": break
                    if d.mn == "s_branch":
                        hops += 1
                        if hops > 4: break
                        j = lab[d.target]; continue
                j += 1
    return [c.text for c in out]
```

```python
import sys, argparse
from asmlib import finalize
NAME = "interleave_layers__sliding_block_cached__sliding_block_cached__decode"
HDR = open("cdna_kernels/" + NAME + ".s.ref").read().split("; Override launch")[0]

OB = 10880
GL = 2688
G_QP, G_CS, G_OP, G_AP, G_ST, G_ML = 0, 1024, 1536, 2048, 2560, 2624
OOBV = 0x7FFF0000
L_WQ, L_K, L_V, L_WO, EX = 0, 36864, 69632, 102400, 135168
EXL = 2688
X_XI, X_QI, X_PI, X_MI, X_LI, X_TR = 0, 576, 1856, 2496, 2560, 2624
L_PROG = EX + 4 * EXL
L_CONS = L_PROG + 64
LDS_TOTAL = EX + 11264
DPPM = "row_mask:0xf bank_mask:0xf"

def vr(b, n=1): return f"v{b}" if n == 1 else f"v[{b}:{b+n-1}]"

def gen(T=20, nt=True, stamps=False, fast=True, budget=400000, cprio=0, lprio=0):
    L = []
    A = L.append
    NT = " nt" if nt else ""
    KR = [8, 40]; VR = [24, 56]; WO = 72; TT = 104; ML = 136; D = 140; M = 148
    aAP, xold, aXW, aX, aWQ, aQS, aQL = 1, 2, 3, 4, 5, 6, 7
    aSTL, aQW, aQR, aPW, aMW, aPR, aMR, aOS, aOL, aML, aAS, aOUT, vST = 152, 153, 154, 155, 156, 157, 161, 162, 163, 164, 165, 166, 167
    WS = "s[8:11]"
    sL, sAP0, sAP1, sCS, sPass, sBud, sOwn, sNW, sFast = "s60", "s61", "s62", "s63", "s42", "s43", "s56", "s57", "s58"
    nst = [0]
    def stamp(i):
        if stamps: A(f"s_memrealtime s[{64+2*i}:{65+2*i}]")
    uid = [0]
    def lab(p):
        uid[0] += 1; return f"L_{p}_{uid[0]}"
    cold = []
    def retry(cond, target, sleep=0):
        s = lab("rt")
        A(f"s_cbranch_{cond} {s}")
        cold.append(f"{s}:")
        if sleep: cold.append(f"s_sleep {sleep}")
        cold.append(f"s_sub_u32 {sBud}, {sBud}, 1")
        cold.append(f"s_cbranch_scc0 {target}")
        cold.append("s_endpgm")
    def wait_prog(thr_sgpr, tmp):
        l = lab("wp")
        A(f"v_mov_b32 v{tmp}, {L_PROG}")
        A(f"{l}:")
        A(f"ds_read_b32 v{tmp+1}, v{tmp}")
        A("s_waitcnt lgkmcnt(0)")
        A(f"v_cmp_gt_i32 vcc, {thr_sgpr}, v{tmp+1}")
        retry("vccnz", l, sleep=1)
    def consumed(stage, tmp):
        A(f"s_lshl_b32 s7, s6, 2")
        A(f"s_add_u32 s7, s7, {L_CONS}")
        A(f"v_mov_b32 v{tmp}, s7")
        A(f"v_mov_b32 v{tmp+1}, {stage}")
        A(f"ds_write_b32 v{tmp}, v{tmp+1}")
    def gstore(ins, fastok):
        if fastok and fast:
            a, b = lab("sl"), lab("sd")
            A(f"s_cmp_eq_u32 {sFast}, 0")
            A(f"s_cbranch_scc1 {a}")
            A(ins)
            A(f"{b}:")
            cold.append(f"{a}:"); cold.append("s_nop 7"); cold.append(ins + " sc1"); cold.append(f"s_branch {b}")
        else:
            A(ins + " sc1")
    def red8(t):
        A(f"v_permlane32_swap_b32 v{t}, v{t+1}")
        A(f"v_permlane32_swap_b32 v{t+2}, v{t+3}")
        A(f"v_add_f32 v{t}, v{t}, v{t+1}")
        A(f"v_add_f32 v{t+2}, v{t+2}, v{t+3}")
        A(f"v_permlane16_swap_b32 v{t}, v{t+2}")
        A(f"v_add_f32 v{t}, v{t}, v{t+2}")
        A(f"v_add_f32_dpp v{t}, v{t}, v{t} row_ror:8 {DPPM}")
    OCT = ["quad_perm:[1,0,3,2]", "quad_perm:[2,3,0,1]", "row_half_mirror"]

    A(f"{NAME}_kernel:")
    stamp(0)
    A("s_cmp_ge_u32 s2, 256")
    A("s_cbranch_scc1 L_end")
    A("s_load_dwordx16 s[16:31], s[0:1], 0")
    A("s_load_dwordx8 s[32:39], s[0:1], 64")
    A("s_load_dwordx2 s[40:41], s[0:1], 96")
    A("v_lshrrev_b32 v1, 6, v0")
    A("v_and_b32 v0, 63, v0")
    A("v_readfirstlane_b32 s3, v1")
    A("s_and_b32 s4, s2, 7"); A("s_lshl_b32 s4, s4, 1"); A("s_lshr_b32 s5, s2, 7"); A("s_add_u32 s4, s4, s5")
    A("s_lshr_b32 s5, s2, 3"); A("s_and_b32 s5, s5, 15")
    A("s_cmp_ge_u32 s5, 14"); A(f"s_cselect_b32 {sNW}, 32, 16")
    A(f"s_mov_b32 {sBud}, {budget}")
    A("s_and_b32 s12, s5, 7")
    A("s_lshr_b32 s13, s5, 3")
    A("s_cmp_eq_u32 s3, 0")
    A("s_cbranch_scc0 L_compute")

    if lprio: A(f"s_setprio {lprio}")
    A("v_lshrrev_b32 v1, 4, v0")
    A("v_and_b32 v2, 15, v0")
    A("v_lshlrev_b32 v3, 1, v1")
    A("v_xor_b32 v3, v3, v2")
    A("v_lshlrev_b32 v3, 4, v3")
    A("v_lshl_add_u32 v10, v1, 13, v3")
    A("v_xor_b32 v11, 0x80, v10")
    A("s_mul_i32 s60, s12, %d" % (72 * 8192))
    A("s_lshl_b32 s7, s4, 1"); A("s_add_u32 s7, s7, s13"); A("s_lshl_b32 s7, s7, 8"); A("s_add_u32 s60, s60, s7")
    A("s_mov_b32 s46, 4718592"); A("s_mov_b32 s47, 0x20000")
    A(f"v_mov_b32 v20, {L_PROG}")
    A(f"v_mov_b32 v21, {1 - T}")
    A("v_lshl_add_u32 v12, v1, 8, v3")
    A("v_xor_b32 v13, 0x80, v12")
    A("v_xor_b32 v3, v1, v2")
    A("v_lshlrev_b32 v3, 4, v3")
    A("v_lshl_add_u32 v14, v1, 8, v3")
    A("v_xor_b32 v15, 0x40, v14"); A("v_xor_b32 v16, 0x80, v14"); A("v_xor_b32 v17, 0xc0, v14")
    A("s_lshl_b32 s61, s13, 24"); A("s_lshl_b32 s7, s4, 20"); A("s_add_u32 s61, s61, s7")
    A("s_lshl_b32 s7, s12, 15"); A("s_add_u32 s61, s61, s7"); A("s_add_u32 s61, s61, %d" % (3072 * 256))
    A("s_mul_i32 s62, s4, %d" % (256 * 1152))
    A("s_lshl_b32 s7, s5, 6"); A("s_cmp_eq_u32 s5, 15"); A("s_cselect_b32 s7, 1024, s7"); A("s_add_u32 s62, s62, s7")
    A("v_lshrrev_b32 v4, 2, v0"); A("v_and_b32 v5, 3, v0"); A("v_lshrrev_b32 v6, 5, v0"); A("v_lshlrev_b32 v6, 1, v6")
    A("v_xor_b32 v5, v5, v6"); A("v_lshlrev_b32 v5, 4, v5"); A("v_mul_u32_u24 v4, 1152, v4"); A("v_add_u32 v18, v4, v5")
    A("v_mov_b32 v19, v18")
    A("s_mov_b32 s63, %d" % (16 * 1152))
    A("s_cmp_ge_u32 s5, 14")
    A("s_cbranch_scc0 L_ld_wo_done")
    A("v_lshrrev_b32 v4, 3, v0"); A("v_and_b32 v5, 7, v0"); A("v_and_b32 v6, 1, v1"); A("v_lshlrev_b32 v6, 1, v6")
    A("v_xor_b32 v5, v5, v6"); A("v_lshlrev_b32 v5, 4, v5"); A("v_mul_u32_u24 v4, 1152, v4"); A("v_add_u32 v18, v4, v5")
    A("v_xor_b32 v5, 0x40, v5"); A("v_add_u32 v19, v4, v5")
    A("s_mov_b32 s63, %d" % (8 * 1152))
    A("L_ld_wo_done:")
    for b in (50, 54): A(f"s_mov_b32 s{b}, 33554432"); A(f"s_mov_b32 s{b+1}, 0x20000")
    A("s_mov_b32 s58, 4718592"); A("s_mov_b32 s59, 0x20000")
    A(f"s_lshr_b32 s15, {sNW}, 2")
    A("v_and_b32 v22, 7, v0"); A("v_lshlrev_b32 v22, 2, v22"); A(f"v_add_u32 v22, {L_CONS}, v22")
    A("s_mov_b32 s42, 0")
    A("s_waitcnt lgkmcnt(0)")
    A("s_mov_b64 s[44:45], s[22:23]"); A("s_mov_b64 s[48:49], s[18:19]"); A("s_mov_b64 s[52:53], s[20:21]"); A("s_mov_b64 s[56:57], s[24:25]")
    A(f"s_mov_b32 s14, {L_WQ}")
    def ld(v, srd, step):
        A(f"s_waitcnt vmcnt({T-1})")
        A(f"buffer_load_dwordx4 v{v}, s[{srd}:{srd+3}], s96 offen{NT} lds")
        A("ds_write_b32 v20, v21")
        A(f"s_add_u32 s96, s96, {step}")
        A("s_add_u32 m0, m0, 1024")
        A("v_add_u32 v21, 1, v21")
    def seg(vs, srd, step, base, ldsb, iters):
        l = lab("seg")
        A(f"s_mov_b32 s96, {base}"); A(f"s_mov_b32 m0, {ldsb}"); A(f"s_mov_b32 s97, {iters}")
        A(f"{l}:")
        for v in vs: ld(v, srd, step)
        A("s_sub_u32 s97, s97, 1"); A("s_cmp_lg_u32 s97, 0"); A(f"s_cbranch_scc1 {l}")
    def wait_cons(stage):
        l, e = lab("wc"), lab("wce")
        A("s_cmp_eq_u32 s42, 0"); A(f"s_cbranch_scc1 {e}")
        A(f"{l}:")
        A("ds_read_b32 v23, v22"); A("s_waitcnt lgkmcnt(0)")
        A(f"v_cmp_gt_i32 vcc, {stage}, v23")
        retry("vccnz", l, sleep=1)
        A(f"{e}:")
    A("L_ld_loop:")
    seg([10, 10, 11, 11], 44, 32768, "s60", "s14", 4)
    ld(11, 44, 32768); ld(11, 44, 32768)
    A("s_cmp_eq_u32 s42, 0"); A("s_cbranch_scc0 L_ld_nobar"); A("s_barrier"); A("L_ld_nobar:")
    wait_cons(1)
    seg([14, 15, 16, 17], 48, 1024, "s61", L_K, 8)
    wait_cons(2)
    seg([12, 12, 13, 13], 52, 1024, "s61", L_V, 8)
    wait_cons(3)
    seg([18, 19, 18, 19], 56, "s63", "s62", L_WO, "s15")
    A("s_cmp_eq_u32 s42, 0"); A("s_cbranch_scc0 L_ld_drain")
    stamp(1)
    A("s_mov_b32 s42, 1")
    A("s_mov_b64 s[44:45], s[32:33]"); A("s_mov_b64 s[48:49], s[28:29]"); A("s_mov_b64 s[52:53], s[30:31]"); A("s_mov_b64 s[56:57], s[34:35]")
    A(f"s_mov_b32 s14, {L_WQ + 18432}")
    A("s_branch L_ld_loop")
    A("L_ld_drain:")
    stamp(2)
    for k in range(T - 1, -1, -1):
        A(f"s_waitcnt vmcnt({k})"); A("ds_write_b32 v20, v21"); A("v_add_u32 v21, 1, v21")
    stamp(3)
    if stamps:
        A("s_waitcnt lgkmcnt(0)")
        A(f"v_mov_b32 v{vST}, 0")
        for i in range(4): A(f"v_writelane_b32 v{vST}, s{64+2*i}, {i}")
        A("s_branch L_stamps")
    A("s_waitcnt lgkmcnt(0)")
    A("s_endpgm")

    A("L_compute:")
    if cprio: A(f"s_setprio {cprio}")
    t = TT
    A("s_sub_u32 s6, s3, 1")
    for i in range(4): A(f"v_mov_b32 v{D+i}, -1")
    A("s_lshl_b32 s7, s6, 10")
    A(f"v_lshl_add_u32 v{t}, v0, 4, s7")
    A(f"v_add_u32 v{t+1}, {EX}, v{t}")
    A(f"ds_write_b128 v{t+1}, {vr(D,4)}")
    A("s_cmp_lt_u32 s6, 3"); A("s_cbranch_scc0 L_fill2")
    A(f"ds_write_b128 v{t+1}, {vr(D,4)} offset:8192")
    A("L_fill2:")
    n_, G_, q4, p_, idx = t+2, t+3, t+4, t+5, t+6
    A(f"v_and_b32 v{n_}, 15, v0"); A(f"v_lshrrev_b32 v{G_}, 4, v0"); A(f"v_and_b32 v{q4}, 7, v0"); A(f"v_lshrrev_b32 v{p_}, 3, v0")
    A(f"v_and_b32 v{idx}, 1, v{G_}"); A(f"v_lshlrev_b32 v{idx}, 1, v{idx}"); A(f"v_lshrrev_b32 v{t+7}, 5, v0"); A(f"v_add_u32 v{idx}, v{idx}, v{t+7}")
    A("s_lshl_b32 s7, s4, 4"); A("s_add_u32 s59, s7, s5"); A(f"s_mul_i32 {sOwn}, s59, {OB}")
    A(f"s_mul_i32 s96, s7, {OB}")
    A("s_lshr_b32 s97, s6, 2")
    A("s_and_b32 s98, s6, 3")
    A("s_mul_i32 s99, s98, 9"); A("s_add_u32 s99, s99, 1"); A("s_lshr_b32 s99, s99, 1")
    A("s_and_b32 s100, s98, 1"); A("s_sub_u32 s100, 5, s100")
    A(f"v_cmp_gt_u32 s[14:15], s100, v{q4}")
    A(f"v_add_u32 v{t+7}, s99, v{q4}"); A(f"v_lshlrev_b32 v{t+7}, 2, v{t+7}")
    A(f"v_add_u32 v{t+8}, v{t+7}, v{idx}")
    A("s_mul_i32 s7, s12, 72")
    A(f"v_add_u32 v{t+7}, s7, v{t+7}")
    A("s_mul_i32 s101, s97, 576"); A("s_add_u32 s7, s7, s101")
    A(f"v_add_u32 v{t+9}, s7, v{t+8}"); A(f"v_lshlrev_b32 v{t+9}, 1, v{t+9}")
    A(f"v_mov_b32 v{t+10}, {OOBV}")
    A(f"v_cndmask_b32 v{aOUT}, v{t+10}, v{t+9}, s[14:15]")
    A("s_waitcnt lgkmcnt(0)")
    A("s_mov_b64 s[8:9], s[40:41]"); A("s_mov_b32 s10, 268435456"); A("s_mov_b32 s11, 0x20000")
    A("s_mov_b64 s[44:45], s[16:17]"); A("s_mov_b32 s46, 2304"); A("s_mov_b32 s47, 0x20000")
    A(f"buffer_load_ushort v{xold}, v{aOUT}, s[44:47], 0 offen")
    A(f"buffer_store_dwordx4 {vr(D,4)}, v{t}, {WS}, {sOwn} offen sc1")
    A(f"v_add_u32 v{t}, 8192, v{t}")
    A(f"v_cmp_gt_u32 vcc, {4*GL}, v{t}")
    A(f"v_cndmask_b32 v{t}, v{t+10}, v{t}, vcc")
    A(f"buffer_store_dwordx4 {vr(D,4)}, v{t}, {WS}, {sOwn} offen sc1")
    A("s_barrier")
    A("s_mov_b64 s[48:49], s[38:39]"); A("s_mov_b32 s50, 256"); A("s_mov_b32 s51, 0x20000")
    A("s_mov_b64 s[52:53], s[36:37]"); A("s_mov_b32 s54, 2304"); A("s_mov_b32 s55, 0x20000")
    A("s_cmp_lt_u32 s6, 4"); A("s_cbranch_scc0 L_const_done")
    A(f"s_mul_i32 s7, s6, {EXL}"); A(f"s_add_u32 s7, s7, {EX}")
    A(f"v_lshlrev_b32 v{t+11}, 4, v0")
    A(f"v_mov_b32 v{t+12}, {384 - 96}"); A(f"v_mov_b32 v{t+13}, {320 - 48}")
    A("v_cmp_gt_u32 vcc, 6, v0"); A(f"v_cndmask_b32 v{t+12}, v{t+12}, v{t+13}, vcc")
    A(f"v_mov_b32 v{t+13}, 128")
    A("v_cmp_gt_u32 vcc, 3, v0"); A(f"v_cndmask_b32 v{t+12}, v{t+12}, v{t+13}, vcc")
    A(f"v_add3_u32 v{t+11}, v{t+11}, v{t+12}, s7")
    A(f"v_mov_b32 v{t+12}, 0")
    A("s_mov_b64 exec, 0x23fc0")
    A(f"v_mov_b32 v{t+12}, 0x3f803f80")
    A("s_mov_b64 exec, 0x3ffff")
    for i in range(1, 4): A(f"v_mov_b32 v{t+12+i}, v{t+12}")
    A(f"ds_write_b128 v{t+11}, {vr(t+12,4)}")
    A("s_mov_b64 exec, -1")
    A("L_const_done:")
    u = t + 16
    A(f"v_lshrrev_b32 v{u}, 5, v{t+7}"); A(f"v_lshrrev_b32 v{u+1}, 6, v{t+7}"); A(f"v_add_u32 v{u+1}, 7, v{u+1}")
    A(f"v_and_b32 v{u+2}, 31, v{t+7}"); A(f"v_and_b32 v{u+3}, 63, v{t+7}")
    A(f"v_cmp_gt_u32 vcc, 448, v{t+7}")
    A(f"v_cndmask_b32 v{u}, v{u+1}, v{u}, vcc"); A(f"v_cndmask_b32 v{u+2}, v{u+3}, v{u+2}, vcc")
    A(f"v_lshl_add_u32 v{u}, v{p_}, 4, v{u}"); A(f"v_mul_u32_u24 v{u}, {OB}, v{u}")
    A(f"v_lshl_add_u32 v{u}, v{u+2}, 2, v{u}")
    A("s_lshl_b32 s7, s97, 8"); A(f"s_add_u32 s7, s7, {G_AP}")
    A(f"v_add_u32 v{u}, s7, v{u}")
    A(f"v_cndmask_b32 v{aAP}, v{t+10}, v{u}, s[14:15]")
    A(f"v_add_u32 v{u}, 24, v{t+8}"); A(f"v_cmp_gt_u32 vcc, 64, v{t+8}"); A(f"v_cndmask_b32 v{u}, v{u}, v{t+8}, vcc")
    A("s_mul_i32 s7, s97, 192"); A(f"s_add_u32 s7, s7, {EX + X_XI}")
    A(f"v_lshl_add_u32 v{u}, v{u}, 1, s7")
    A(f"v_mov_b32 v{u+1}, {EX + X_TR}")
    A(f"v_cndmask_b32 v{aXW}, v{u+1}, v{u}, s[14:15]")
    n4, n3 = u + 4, u + 5
    A(f"v_lshrrev_b32 v{n4}, 2, v{n_}"); A(f"v_and_b32 v{n3}, 3, v{n_}")
    G1, G2 = u + 6, u + 7
    A(f"v_and_b32 v{G1}, 1, v{G_}"); A(f"v_lshrrev_b32 v{G2}, 1, v{G_}")
    A(f"v_and_b32 v{u}, 1, v{n4}"); A(f"v_mul_u32_u24 v{u+1}, 192, v{u}"); A(f"v_mov_b32 v{u+2}, 384")
    A(f"v_cmp_eq_u32 vcc, 0, v{n3}"); A(f"v_cndmask_b32 v{u+1}, v{u+2}, v{u+1}, vcc")
    A(f"v_lshl_add_u32 v{u+1}, v{G_}, 4, v{u+1}"); A(f"v_add_u32 v{aX}, {EX + X_XI}, v{u+1}")
    A(f"v_mul_u32_u24 v{u+1}, 320, v{u}"); A(f"v_add_u32 v{u+2}, 640, v{u+1}")
    A(f"v_cmp_eq_u32 vcc, 1, v{n3}"); A(f"v_cndmask_b32 v{u+1}, v{u+1}, v{u+2}, vcc")
    A(f"v_lshl_add_u32 v{u+1}, v{G_}, 4, v{u+1}"); A(f"v_add_u32 v{aQR}, {EX + X_QI}, v{u+1}")
    A(f"v_lshl_add_u32 v{u}, v{G_}, 3, v{n4}"); A(f"v_lshlrev_b32 v{u}, 8, v{u}")
    A(f"v_lshl_or_b32 v{u+1}, v{G1}, 2, v{n4}"); A(f"v_xor_b32 v{u+1}, s6, v{u+1}")
    A(f"v_lshl_add_u32 v{u}, v{u+1}, 5, v{u}"); A(f"v_lshl_add_u32 v{aWQ}, v{n3}, 3, v{u}")
    A("s_lshl_b32 s7, s6, 6"); A(f"s_add_u32 s7, s7, {sOwn}")
    A(f"v_lshl_add_u32 v{u}, v{G_}, 4, s7")
    A(f"v_mov_b32 v{aQS}, v{t+10}")
    A(f"v_cmp_eq_u32 vcc, 0, v{n_}"); A(f"v_cndmask_b32 v{aQS}, v{aQS}, v{u}, vcc")
    A(f"v_add_u32 v{u}, 512, v{u}"); A(f"v_cmp_eq_u32 vcc, 4, v{n_}"); A(f"v_cndmask_b32 v{aQS}, v{aQS}, v{u}, vcc")
    A(f"v_add_u32 v{u}, 512, v{u}"); A(f"v_cmp_eq_u32 vcc, 1, v{n_}"); A(f"v_cndmask_b32 v{aQS}, v{aQS}, v{u}, vcc")
    A(f"s_mul_i32 s7, s97, {8*OB}"); A("s_add_u32 s7, s7, s96"); A("s_lshl_b32 s101, s13, 9"); A("s_add_u32 s7, s7, s101")
    A("s_lshl_b32 s101, s98, 7"); A("s_add_u32 s7, s7, s101")
    A(f"v_mul_u32_u24 v{u}, {OB}, v{p_}"); A(f"v_lshl_add_u32 v{u}, v{q4}, 4, v{u}"); A(f"v_add_u32 v{aQL}, s7, v{u}")
    A(f"s_mul_i32 s7, s13, {8*OB + 8}"); A("s_add_u32 s7, s7, s96"); A(f"s_add_u32 s7, s7, {G_ST}")
    A(f"v_mul_u32_u24 v{u}, {OB}, v{q4}"); A(f"v_add_u32 v{aSTL}, s7, v{u}")
    A("s_mul_i32 s7, s97, 320"); A("s_lshl_b32 s101, s98, 6"); A("s_add_u32 s7, s7, s101"); A(f"s_add_u32 s7, s7, {EX + X_QI}")
    A(f"v_lshl_add_u32 v{u}, v{q4}, 2, v{idx}"); A(f"v_lshl_add_u32 v{aQW}, v{u}, 1, s7")
    A("s_lshl_b32 s7, s6, 5"); A(f"s_add_u32 s7, s7, {EX + X_PI}")
    A(f"v_mul_u32_u24 v{u}, 320, v{G1}"); A(f"v_lshl_add_u32 v{u}, v{n_}, 1, v{u}"); A(f"v_add_u32 v{aPW}, s7, v{u}")
    A("s_lshl_b32 s7, s6, 2"); A(f"s_add_u32 s7, s7, {EX + X_MI}")
    A(f"v_lshl_add_u32 v{aMW}, v{G1}, 5, s7")
    A(f"v_lshrrev_b32 v{u}, 3, v{n_}"); A(f"v_mul_u32_u24 v{u}, 320, v{u}"); A(f"v_lshl_add_u32 v{u}, v{q4}, 5, v{u}")
    A(f"v_lshl_add_u32 v{u}, v{G1}, 4, v{u}"); A(f"v_add_u32 v{u}, {EX + X_PI}, v{u}")
    A(f"v_mov_b32 v{u+1}, {EX + X_XI + 128}")
    A(f"v_xor_b32 v{u+2}, v{q4}, v{G2}")
    for s in range(4):
        A(f"v_cmp_eq_u32 vcc, {2*s}, v{u+2}"); A(f"v_cndmask_b32 v{aPR+s}, v{u+1}, v{u}, vcc")
    A(f"v_lshl_add_u32 v{u}, v{G1}, 2, v{n_}"); A(f"v_and_b32 v{u}, 7, v{u}"); A(f"v_lshl_add_u32 v{u}, v{G2}, 3, v{u}")
    A(f"v_lshlrev_b32 v{u+1}, 2, v{u}"); A(f"v_add_u32 v{aMR}, {EX + X_MI}, v{u+1}")
    A(f"v_mul_u32_u24 v{u}, {OB}, v{u}"); A(f"s_add_u32 s7, s96, {G_ML}"); A(f"v_add_u32 v{aML}, s7, v{u}")
    A(f"v_cmp_eq_u32 vcc, 0, v{G1}")
    A("s_lshl_b32 s7, s6, 5"); A(f"s_add_u32 s7, s7, {sOwn}"); A(f"s_add_u32 s7, s7, {G_OP}")
    A(f"v_lshlrev_b32 v{u}, 8, v{G2}"); A(f"v_lshl_add_u32 v{u+1}, v{n_}, 1, v{u}"); A(f"v_add_u32 v{u+1}, s7, v{u+1}")
    A(f"v_cndmask_b32 v{aOS}, v{t+10}, v{u+1}, vcc")
    A("s_lshl_b32 s7, s98, 6"); A(f"s_add_u32 s7, s7, {sOwn}"); A(f"s_add_u32 s7, s7, {G_AP}")
    A(f"v_lshl_add_u32 v{u+1}, v{n_}, 2, v{u}"); A(f"v_add_u32 v{u+1}, s7, v{u+1}")
    A(f"v_cndmask_b32 v{aAS}, v{t+10}, v{u+1}, vcc")
    A(f"v_mul_u32_u24 v{u}, {OB}, v{n_}"); A(f"v_lshl_add_u32 v{u}, v{G_}, 4, v{u}"); A(f"s_add_u32 s7, s96, {G_OP}"); A(f"v_add_u32 v{aOL}, s7, v{u}")
    A(f"s_mov_b32 {sPass}, 0"); A(f"s_mov_b32 {sL}, 0"); A(f"s_mov_b32 {sFast}, 0")
    A(f"s_lshl_b32 s7, s13, 9"); A(f"s_sub_u32 {sCS}, {G_CS}, s7")
    A(f"s_lshr_b32 s7, {sNW}, 3"); A("s_cmp_lt_u32 s98, s7"); A("s_cselect_b32 s15, s97, 2")
    A("s_mov_b32 s98, 1"); A("s_mov_b32 s99, 1")
    A("s_mov_b32 s100, 0x3ae38e39")
    A("s_mov_b32 s101, 0x3e0293ee")
    if stamps: A(f"v_mov_b32 v{vST}, 0")
    A("s_waitcnt vmcnt(0)")
    A(f"ds_write_b16 v{aXW}, v{xold}")
    A(f"v_lshlrev_b32 v{xold}, 16, v{xold}")
    stamp(1)
    WQT = TT + 16
    def wq_reads(tau):
        for s in range(3):
            for h in range(2):
                off = tau * 18432 + (s * 8192 if s < 2 else 10240) + h * 1024
                A(f"ds_read_b64_tr_b16 {vr(WQT + 4*s + 2*h, 2)}, v{aWQ} offset:{off}")
    A("s_mov_b32 s14, 18")
    wait_prog("s14", M)
    wq_reads(0)
    A("s_branch L_P2_0")

    def p1_core(t):
        A("s_waitcnt vmcnt(0)")
        A(f"v_pk_add_f32 {vr(t,2)}, {vr(t,2)}, {vr(t+4,2)}")
        A(f"v_pk_add_f32 {vr(t+2,2)}, {vr(t+2,2)}, {vr(t+6,2)}")
        red8(t)
        A(f"v_add_f32 v{t}, v{t}, v{xold}")
        A(f"v_cvt_pk_bf16_f32 v{t+1}, v{t}, v{t}")
    def p1_loads(t):
        A(f"buffer_load_dwordx4 {vr(t,4)}, v{aAP}, {WS}, {sAP0} offen sc1")
        A(f"buffer_load_dwordx4 {vr(t+4,4)}, v{aAP}, {WS}, {sAP1} offen sc1")
    def next_layer():
        A(f"s_mov_b32 {sAP0}, {sL}"); A(f"s_add_u32 {sAP1}, {sL}, {128*OB}")
        A(f"s_add_u32 {sL}, {sL}, {GL}"); A(f"s_add_u32 {sCS}, {sCS}, {GL}")

    for tau in range(2):
        E = tau * EXL
        sb = 2 + 7 * tau
        K, V = KR[tau], VR[tau]
        A(f"L_P1_{tau}:")
        p1_loads(t)
        if tau == 1:
            sk = lab("sk")
            A(f"s_cmp_eq_u32 {sPass}, 0"); A(f"s_cbranch_scc0 {sk}")
            A(f"s_add_u32 s14, {sNW}, 100")
            wait_prog("s14", M)
            A(f"{sk}:")
        wq_reads(tau)
        A(f"L_P1w_{tau}:")
        p1_core(t)
        A(f"ds_write_b16 v{aXW}, v{t+1} offset:{E}")
        A(f"v_cmp_u_f32 vcc, v{t}, v{t}")
        retry("vccnz", f"L_P1r_{tau}")
        cold.append(f"L_P1r_{tau}:")
        cold.append(f"buffer_load_dwordx4 {vr(t,4)}, v{aAP}, {WS}, {sAP0} offen sc1")
        cold.append(f"buffer_load_dwordx4 {vr(t+4,4)}, v{aAP}, {WS}, {sAP1} offen sc1")
        cold.append(f"s_branch L_P1w_{tau}")
        A(f"v_mov_b32 v{xold}, v{t}")
        stamp(sb)
        A(f"L_P2_{tau}:")
        for s in range(3): A(f"ds_read_b128 {vr(t+4*s,4)}, v{aX} offset:{E + 64*s}")
        for s in range(3):
            A(f"s_waitcnt lgkmcnt({0 if stamps else 2-s})")
            A(f"v_mfma_f32_16x16x32_bf16 {vr(D,4)}, {vr(WQT+4*s,4)}, {vr(t+4*s,4)}, {0 if s == 0 else vr(D,4)}")
        gstore(f"buffer_store_dwordx4 {vr(D,4)}, v{aQS}, {WS}, {sL} offen", True)
        A(f"v_cmp_u_f32 vcc, v{D}, v{D}")
        retry("vccnz", f"L_P2_{tau}")
        sk = lab("sk")
        A("s_cmp_eq_u32 s6, 0"); A(f"s_cbranch_scc0 {sk}")
        for s in range(3):
            A(f"v_mfma_f32_16x16x32_bf16 {vr(D+4,4)}, {vr(t+4*s,4)}, {vr(t+4*s,4)}, {0 if s == 0 else vr(D+4,4)}")
        A(f"v_lshrrev_b32 v{M}, 1, v0"); A(f"v_and_b32 v{M}, 8, v{M}"); A(f"v_add_u32 v{M}, {sOwn}, v{M}")
        A("s_mov_b64 exec, 0x100001")
        gstore(f"buffer_store_dwordx2 {vr(D+4,2)}, v{M}, {WS}, {sL} offen offset:{G_ST}", True)
        if tau == 0:
            s2 = lab("sk")
            A(f"s_cmp_eq_u32 {sPass}, 0"); A(f"s_cbranch_scc0 {s2}")
            A("s_getreg_b32 s7, hwreg(HW_REG_XCC_ID)"); A("s_and_b32 s7, s7, 15"); A("s_or_b32 s7, s7, 16")
            A(f"v_mov_b32 v{M}, s59"); A(f"v_mov_b32 v{M+1}, s7")
            A(f"buffer_store_byte v{M+1}, v{M}, s[48:51], 0 offen sc1")
            A(f"{s2}:")
        A("s_mov_b64 exec, -1")
        A(f"{sk}:")
        stamp(sb + 1)
        if tau == 0:
            s2, l = lab("sk"), lab("gc")
            A(f"s_cmp_eq_u32 {sPass}, 0"); A(f"s_cbranch_scc0 {s2}")
            A(f"v_and_b32 v{M}, 3, v0"); A("s_lshl_b32 s7, s4, 4"); A(f"v_lshl_add_u32 v{M}, v{M}, 2, s7")
            A("s_mov_b32 s14, 0x10101010")
            A(f"{l}:")
            A(f"buffer_load_dword v{M+1}, v{M}, s[48:51], 0 offen sc1")
            A("s_waitcnt vmcnt(0)")
            A(f"v_and_b32 v{M+2}, s14, v{M+1}")
            A(f"v_cmp_ne_u32 vcc, s14, v{M+2}")
            retry("vccnz", l, sleep=2)
            A("s_getreg_b32 s7, hwreg(HW_REG_XCC_ID)"); A("s_and_b32 s7, s7, 15"); A("s_or_b32 s7, s7, 16"); A("s_mul_i32 s7, s7, 0x01010101")
            A(f"v_cmp_ne_u32 vcc, s7, v{M+1}")
            A("s_cmp_eq_u64 vcc, 0")
            A(f"s_cselect_b32 {sFast}, 1, 0")
            A(f"{s2}:")
        A(f"L_P3_{tau}:")
        A(f"buffer_load_dwordx4 {vr(t,4)}, v{aQL}, {WS}, {sL} offen sc1")
        A(f"buffer_load_dwordx2 {vr(t+4,2)}, v{aSTL}, {WS}, {sL} offen sc1")
        sk = lab("sk")
        A(f"s_cmp_eq_u32 {sPass}, 0"); A(f"s_cbranch_scc0 {sk}")
        A(f"buffer_load_dwordx4 {vr(t+8,4)}, v{aQL}, {WS}, {sCS} offen sc1")
        A(f"{sk}:")
        A("s_waitcnt vmcnt(0)")
        red8(t)
        A(f"v_cvt_pk_bf16_f32 v{t+1}, v{t}, v{t}")
        A(f"ds_write_b16 v{aQW}, v{t+1} offset:{E}")
        for o in OCT:
            A(f"v_add_f32_dpp v{t+4}, v{t+4}, v{t+4} {o} {DPPM}")
            A(f"v_add_f32_dpp v{t+5}, v{t+5}, v{t+5} {o} {DPPM}")
        sk = lab("sk")
        A(f"s_cbranch_scc0 {sk}")
        red8(t + 8)
        A(f"v_cvt_pk_bf16_f32 v{t+9}, v{t+8}, v{t+8}")
        A(f"ds_write_b16 v{aQW}, v{t+9} offset:{E + 640}")
        A(f"ds_write_b16 v{aQW}, v{t+9} offset:{E + 640 + 2*EXL}")
        A(f"v_add_f32 v{t}, v{t}, v{t+8}")
        A(f"{sk}:")
        al, be = M + 2, M + 3
        A(f"v_mul_f32 v{t+5}, s100, v{t+5}")
        A(f"v_mul_f32 v{t+6}, v{t+5}, v{t+5}")
        A(f"v_fma_f32 v{t+4}, v{t+4}, s100, -v{t+6}")
        A(f"v_cmp_u_f32 vcc, v{t}, v{t+4}")
        retry("vccnz", f"L_P3_{tau}")
        A(f"v_max_f32 v{t+4}, 0, v{t+4}")
        A(f"v_add_f32 v{t+4}, 0x3727c5ac, v{t+4}")
        A(f"v_rsq_f32 v{t+4}, v{t+4}")
        A(f"v_mul_f32 v{al}, s101, v{t+4}")
        A(f"v_mul_f32 v{be}, -v{t+5}, v{al}")
        stamp(sb + 2)
        sk = lab("sk")
        A(f"s_cmp_eq_u32 {sPass}, 0"); A(f"s_cbranch_scc0 {sk}")
        A(f"s_lshl_b32 s14, s6, 2"); A(f"s_add_u32 s14, s14, {22 if tau == 0 else 104}")
        if tau: A(f"s_add_u32 s14, s14, {sNW}")
        wait_prog("s14", M)
        A(f"v_and_b32 v{t}, 15, v0"); A(f"v_lshrrev_b32 v{t+1}, 4, v0"); A(f"v_xor_b32 v{t+1}, v{t+1}, v{t}")
        A(f"v_lshlrev_b32 v{t}, 8, v{t}"); A(f"v_lshl_add_u32 v{t}, v{t+1}, 4, v{t}")
        A(f"s_lshl_b32 s7, s6, 12"); A(f"s_add_u32 s7, s7, {L_K}"); A(f"v_add_u32 v{t}, s7, v{t}")
        for s in range(1, 4): A(f"v_xor_b32 v{t+s}, {64*s}, v{t}")
        for s in range(4): A(f"ds_read_b128 {vr(K+4*s,4)}, v{t+s}")
        A("s_waitcnt lgkmcnt(0)")
        if tau == 0: consumed(1, M)
        A(f"{sk}:")
        A(f"L_P4_{tau}:")
        for s in range(4): A(f"ds_read_b128 {vr(t+4*s,4)}, v{aQR} offset:{E + 64*s}")
        for s in range(4):
            A(f"s_waitcnt lgkmcnt({0 if stamps else 3-s})")
            A(f"v_mfma_f32_16x16x32_bf16 {vr(D,4)}, {vr(t+4*s,4)}, {vr(K+4*s,4)}, {0 if s == 0 else vr(D,4)}")
        x = t + 16
        A(f"v_mul_f32 v{x}, v{be}, v{D+1}")
        A(f"v_fmac_f32 v{x}, v{al}, v{D}")
        A(f"v_max_f32_dpp v{x+1}, v{x}, v{x} {OCT[0]} {DPPM}")
        A(f"v_max_f32_dpp v{x+1}, v{x+1}, v{x+1} {OCT[1]} {DPPM}")
        A(f"v_max_f32_dpp v{x+1}, v{x+1}, v{x+1} {OCT[2]} {DPPM}")
        A(f"v_max_f32_dpp v{x+1}, v{x+1}, v{x+1} row_ror:8 {DPPM}")
        A(f"v_sub_f32 v{x+2}, v{x}, v{x+1}")
        A(f"v_exp_f32 v{x+2}, v{x+2}")
        A(f"ds_write_b32 v{aMW}, v{x+1} offset:{E}")
        A(f"v_cvt_pk_bf16_f32 v{x+3}, v{x+2}, v{x+2}")
        A(f"ds_write_b16 v{aPW}, v{x+3} offset:{E}")
        A(f"v_cmp_u_f32 vcc, v{x}, v{x}")
        retry("vccnz", f"L_P4_{tau}")
        for o in OCT + ["row_ror:8"]:
            A(f"v_add_f32_dpp v{x+2}, v{x+2}, v{x+2} {o} {DPPM}")
        A(f"ds_write_b32 v{aMW}, v{x+2} offset:{E + 64}")
        stamp(sb + 3)
        sk = lab("sk")
        A(f"s_cmp_eq_u32 {sPass}, 0"); A(f"s_cbranch_scc0 {sk}")
        if tau == 0:
            l = lab("gc")
            A(f"v_lshlrev_b32 v{M}, 2, v0")
            A("s_mov_b32 s14, 0x10101010")
            A(f"{l}:")
            A(f"buffer_load_dword v{M+1}, v{M}, s[48:51], 0 offen sc1")
            A("s_waitcnt vmcnt(0)")
            A(f"v_and_b32 v{M+1}, s14, v{M+1}")
            A(f"v_cmp_ne_u32 vcc, s14, v{M+1}")
            retry("vccnz", l, sleep=2)
            A("s_mov_b32 s14, 82")
        else:
            A(f"s_add_u32 s14, {sNW}, 164")
        wait_prog("s14", M)
        A(f"v_add_u32 v{M}, {L_V}, v{aWQ}")
        for s in range(4):
            for h in range(2):
                A(f"ds_read_b64_tr_b16 {vr(V + 4*s + 2*h, 2)}, v{M} offset:{s*8192 + h*1024}")
        A("s_waitcnt lgkmcnt(0)")
        if tau == 0: consumed(2, M)
        A(f"{sk}:")
        A(f"L_P5_{tau}:")
        A(f"ds_read_b32 v{x}, v{aMR} offset:{E}")
        for s in range(4): A(f"ds_read_b128 {vr(t+4*s,4)}, v{aPR+s} offset:{E}")
        fill = [f"v_max_f32_dpp v{x+1}, v{x}, v{x} {OCT[0]} {DPPM}",
                f"v_max_f32_dpp v{x+1}, v{x+1}, v{x+1} {OCT[1]} {DPPM}",
                f"v_max_f32_dpp v{x+1}, v{x+1}, v{x+1} {OCT[2]} {DPPM}",
                f"v_sub_f32 v{x+2}, v{x}, v{x+1}"]
        for s in range(4):
            A(f"s_waitcnt lgkmcnt({0 if stamps else 3-s})")
            A(f"v_mfma_f32_16x16x32_bf16 {vr(D,4)}, {vr(t+4*s,4)}, {vr(V+4*s,4)}, {0 if s == 0 else vr(D,4)}")
            A(fill[s])
        A(f"v_exp_f32 v{x+2}, v{x+2}")
        A(f"ds_read_b32 v{x+5}, v{aMR} offset:{E + 64}")
        A(f"v_mul_f32_dpp v{x+3}, v{x+2}, v{D} row_newbcast:0 {DPPM}")
        A(f"v_mul_f32_dpp v{x+4}, v{x+2}, v{D+1} row_newbcast:1 {DPPM}")
        A(f"v_fmac_f32_dpp v{x+3}, v{x+2}, v{D+2} row_newbcast:2 {DPPM}")
        A(f"v_fmac_f32_dpp v{x+4}, v{x+2}, v{D+3} row_newbcast:3 {DPPM}")
        A(f"v_add_f32 v{x+3}, v{x+3}, v{x+4}")
        A(f"v_mov_b32 v{x+4}, v{x+3}")
        A(f"v_permlane16_swap_b32 v{x+3}, v{x+4}")
        A(f"v_add_f32 v{x+3}, v{x+3}, v{x+4}")
        A(f"v_cvt_pk_bf16_f32 v{x+4}, v{x+3}, v{x+3}")
        gstore(f"buffer_store_short v{x+4}, v{aOS}, {WS}, {sL} offen", True)
        A(f"v_cmp_u_f32 vcc, v{x+3}, v{x+3}")
        retry("vccnz", f"L_P5_{tau}")
        sk, l = lab("sk"), lab("ml")
        A("s_cmp_eq_u32 s6, 0"); A(f"s_cbranch_scc0 {sk}")
        A(f"v_lshrrev_b32 v{M}, 2, v0"); A(f"v_add_u32 v{M}, {sOwn}, v{M}")
        A(f"v_mov_b32 v{x+6}, v{x+1}")
        A(f"{l}:")
        A("s_waitcnt lgkmcnt(0)")
        A(f"v_mul_f32 v{x+7}, v{x+5}, v{x+2}")
        for o in OCT: A(f"v_add_f32_dpp v{x+7}, v{x+7}, v{x+7} {o} {DPPM}")
        A("s_mov_b64 exec, s[98:99]")
        gstore(f"buffer_store_dwordx2 {vr(x+6,2)}, v{M}, {WS}, {sL} offen offset:{G_ML}", True)
        A("s_mov_b64 exec, -1")
        A(f"v_cmp_u_f32 vcc, v{x+7}, v{x+7}")
        r = lab("mlr")
        retry("vccnz", r)
        cold.append(f"{r}:"); cold.append(f"ds_read_b32 v{x+5}, v{aMR} offset:{E + 64}"); cold.append(f"s_branch {l}")
        A(f"{sk}:")
        stamp(sb + 4)
        end6 = f"L_P6e_{tau}"
        A(f"s_cmp_eq_u32 s15, {tau}"); A(f"s_cbranch_scc0 {end6}")
        sk = lab("sk")
        A(f"s_cmp_eq_u32 {sPass}, 0"); A(f"s_cbranch_scc0 {sk}")
        if tau == 0: A(f"s_add_u32 s14, {sNW}, 82")
        else: A(f"s_lshl_b32 s14, {sNW}, 1"); A("s_add_u32 s14, s14, 164")
        wait_prog("s14", M)
        A(f"v_lshrrev_b32 v{t}, 4, v0"); A(f"v_bfe_u32 v{t+1}, v0, 2, 2"); A(f"v_lshl_add_u32 v{t+1}, v{t}, 3, v{t+1}")
        A(f"v_and_b32 v{t}, 1, v{t}")
        A(f"v_and_b32 v{t+2}, 3, v0"); A(f"v_lshlrev_b32 v{t+2}, 3, v{t+2}"); A(f"v_add_u32 v{t+2}, {L_WO}, v{t+2}")
        A("s_and_b32 s7, s6, 3")
        w64, wd = lab("w64"), lab("wd")
        A(f"s_cmp_eq_u32 {sNW}, 32"); A(f"s_cbranch_scc1 {w64}")
        A(f"v_xor_b32 v{t}, s7, v{t}"); A(f"v_lshl_add_u32 v{t+2}, v{t}, 5, v{t+2}"); A(f"v_lshl_add_u32 v{t+2}, v{t+1}, 6, v{t+2}")
        for s in range(8):
            for h in range(2): A(f"ds_read_b64_tr_b16 {vr(WO + 4*s + 2*h, 2)}, v{t+2} offset:{s*2048 + h*256}")
        A(f"s_branch {wd}")
        A(f"{w64}:")
        A(f"v_bfe_u32 v{t+3}, v0, 3, 1"); A(f"v_lshl_or_b32 v{t}, v{t}, 1, v{t+3}")
        A(f"v_xor_b32 v{t}, s7, v{t}"); A(f"v_lshl_add_u32 v{t+2}, v{t}, 5, v{t+2}"); A(f"v_lshl_add_u32 v{t+2}, v{t+1}, 7, v{t+2}")
        for s in range(8):
            for h in range(2): A(f"ds_read_b64_tr_b16 {vr(WO + 4*s + 2*h, 2)}, v{t+2} offset:{s*4096 + h*512}")
        A(f"{wd}:")
        A(f"{sk}:")
        stamp(sb + 5)
        A("s_waitcnt lgkmcnt(0)")
        A(f"L_P6_{tau}:")
        A(f"buffer_load_dwordx4 {vr(ML,4)}, v{aML}, {WS}, {sL} offen sc1")
        for s in range(8): A(f"buffer_load_dwordx4 {vr(t+4*s,4)}, v{aOL}, {WS}, {sL} offen offset:{64*s} sc1")
        A("s_waitcnt vmcnt(8)")
        m0, l0, m1, l1 = ML, ML + 1, ML + 2, ML + 3
        fl = []
        fl.append(f"v_max_f32_dpp v{M}, v{m0}, v{m0} {OCT[0]} {DPPM}"); fl.append(f"v_max_f32_dpp v{M+1}, v{m1}, v{m1} {OCT[0]} {DPPM}")
        for o in OCT[1:]:
            fl.append(f"v_max_f32_dpp v{M}, v{M}, v{M} {o} {DPPM}"); fl.append(f"v_max_f32_dpp v{M+1}, v{M+1}, v{M+1} {o} {DPPM}")
        fl.append(f"v_sub_f32 v{m0}, v{m0}, v{M}"); fl.append(f"v_sub_f32 v{m1}, v{m1}, v{M+1}")
        fl.append(f"v_exp_f32 v{m0}, v{m0}"); fl.append(f"v_exp_f32 v{m1}, v{m1}")
        fl.append(f"v_mul_f32 v{l0}, v{l0}, v{m0}"); fl.append(f"v_mul_f32 v{l1}, v{l1}, v{m1}")
        for o in OCT:
            fl.append(f"v_add_f32_dpp v{l0}, v{l0}, v{l0} {o} {DPPM}"); fl.append(f"v_add_f32_dpp v{l1}, v{l1}, v{l1} {o} {DPPM}")
        fl.append(f"v_rcp_f32 v{l0}, v{l0}"); fl.append(f"v_rcp_f32 v{l1}, v{l1}")
        fl.append(f"v_mul_f32 v{m0}, v{m0}, v{l0}"); fl.append(f"v_mul_f32 v{m1}, v{m1}, v{l1}")
        A(fl.pop(0)); A(fl.pop(0))
        for s in range(8):
            d = D + 4 * (s // 4)
            A(f"s_waitcnt vmcnt({7-s})")
            A(f"v_mfma_f32_16x16x32_bf16 {vr(d,4)}, {vr(t+4*s,4)}, {vr(WO+4*s,4)}, {0 if s % 4 == 0 else vr(d,4)}")
            A(fl.pop(0)); A(fl.pop(0))
        while fl: A(fl.pop(0))
        A(f"v_mul_f32_dpp v{M}, v{m0}, v{D} row_newbcast:0 {DPPM}")
        A(f"v_mul_f32_dpp v{M+1}, v{m0}, v{D+1} row_newbcast:1 {DPPM}")
        A(f"v_mul_f32_dpp v{M+2}, v{m0}, v{D+2} row_newbcast:2 {DPPM}")
        A(f"v_fmac_f32_dpp v{M}, v{m0}, v{D+3} row_newbcast:3 {DPPM}")
        A(f"v_fmac_f32_dpp v{M+1}, v{m1}, v{D+4} row_newbcast:0 {DPPM}")
        A(f"v_fmac_f32_dpp v{M+2}, v{m1}, v{D+5} row_newbcast:1 {DPPM}")
        A(f"v_fmac_f32_dpp v{M}, v{m1}, v{D+6} row_newbcast:2 {DPPM}")
        A(f"v_fmac_f32_dpp v{M+1}, v{m1}, v{D+7} row_newbcast:3 {DPPM}")
        A(f"v_add_f32 v{M}, v{M}, v{M+2}")
        A(f"v_add_f32 v{M+2}, v{M}, v{M+1}")
        A(f"v_add_f32 v{M}, v{M}, v{M+1}")
        A(f"v_permlane16_swap_b32 v{M}, v{M+2}")
        A(f"v_add_f32 v{M}, v{M}, v{M+2}")
        A(f"v_cmp_u_f32 vcc, v{M}, v{M}")
        retry("vccnz", f"L_P6_{tau}")
        A(f"buffer_store_dword v{M}, v{aAS}, {WS}, {sL} offen sc1")
        A(f"{end6}:")
        stamp(sb + 6)
        if tau == 0:
            sk = lab("sk")
            A(f"s_cmp_eq_u32 {sPass}, 0"); A(f"s_cbranch_scc0 {sk}")
            consumed(3, M + 2)
            A(f"{sk}:")
        next_layer()
    A(f"s_cmp_eq_u32 {sPass}, 0"); A("s_cbranch_scc0 L_final")
    A(f"s_mov_b32 {sPass}, 1")
    for a in (aXW, aX, aQW, aQR, aPW, aMW, aPR, aPR + 1, aPR + 2, aPR + 3, aMR):
        A(f"v_add_u32 v{a}, {2*EXL}, v{a}")
    if stamps:
        A("s_waitcnt lgkmcnt(0)")
        for i in range(16): A(f"v_writelane_b32 v{vST}, s{64+2*i}, {i}")
    A("s_branch L_P1_0")
    A("L_final:")
    A("s_cmp_lt_u32 s59, 8"); A("s_cbranch_scc0 L_fin_done")
    A("L_PF:")
    p1_loads(t)
    p1_core(t)
    A(f"v_cmp_u_f32 vcc, v{t}, v{t}")
    retry("vccnz", "L_PF")
    A(f"buffer_store_short v{t+1}, v{aOUT}, s[52:55], 0 offen")
    A("L_fin_done:")
    if stamps:
        stamp(1)
        A("s_waitcnt vmcnt(0)")
        stamp(0)
        A("s_waitcnt lgkmcnt(0)")
        for i in range(2, 16): A(f"v_writelane_b32 v{vST}, s{64+2*i}, {14 + i}")
        A(f"v_writelane_b32 v{vST}, s66, 30"); A(f"v_writelane_b32 v{vST}, s64, 31")
        A("L_stamps:")
        A("s_mov_b64 s[8:9], s[40:41]"); A("s_mov_b32 s10, 268435456"); A("s_mov_b32 s11, 0x20000")
        A("s_mul_i32 s7, s2, 9"); A("s_add_u32 s7, s7, s3"); A("s_lshl_b32 s7, s7, 8"); A(f"s_add_u32 s7, s7, {128 << 20}")
        A("v_lshlrev_b32 v1, 3, v0")
        A(f"v_mov_b32 v2, v{vST}"); A("v_mov_b32 v3, 0")
        A("s_mov_b32 exec_lo, -1"); A("s_mov_b32 exec_hi, 0")
        A("buffer_store_dwordx2 v[2:3], v1, s[8:11], s7 offen")
    A("L_end:")
    A("s_endpgm")
    L += cold
    body = finalize(L)
    out = [HDR.rstrip("\n"), f"; @launch grid=(256,1,1) block=(576,1,1) lds={LDS_TOTAL}",
           '.amdgcn_target "amdgcn-amd-amdhsa--gfx950"', ".text", f".globl {NAME}_kernel", ".p2align 8", f".type {NAME}_kernel,@function"]
    out += [(l if l.endswith(":") else "    " + l) for l in body]
    out += ['.section .rodata,"a"', ".p2align 6", f".amdhsa_kernel {NAME}_kernel", "  .amdhsa_next_free_vgpr 168", "  .amdhsa_next_free_sgpr 102",
            "  .amdhsa_accum_offset 168", "  .amdhsa_group_segment_fixed_size 0", "  .amdhsa_kernarg_size 104", "  .amdhsa_user_sgpr_count 2",
            "  .amdhsa_user_sgpr_kernarg_segment_ptr 1", "  .amdhsa_system_sgpr_workgroup_id_x 1", ".end_amdhsa_kernel"]
    return "\n".join(out) + "\n"

if __name__ == "__main__":
    ap = argparse.ArgumentParser()
    ap.add_argument("out"); ap.add_argument("--T", type=int, default=20); ap.add_argument("--nont", action="store_true")
    ap.add_argument("--stamps", action="store_true"); ap.add_argument("--nofast", action="store_true")
    ap.add_argument("--budget", type=int, default=400000); ap.add_argument("--cprio", type=int, default=0); ap.add_argument("--lprio", type=int, default=0)
    a = ap.parse_args()
    open(a.out, "w").write(gen(T=a.T, nt=not a.nont, stamps=a.stamps, fast=not a.nofast, cprio=a.cprio, lprio=a.lprio, budget=a.budget))
```

```python
import sys, argparse
from asmlib import finalize
NAME = "interleave_layers__sliding_block_cached__sliding_block_cached__decode"
HDR = open("cdna_kernels/" + NAME + ".s.ref").read().split("; Override launch")[0]

GL = 33280
GS = 4 * GL + 128
G_QP, G_CS, G_OP, G_ST, G_ML = 0, 16384, 24576, 32768, 32896
APB = 16 * GS
APL = 73728
FLB = APB + 4 * APL
OOBV = 0x7FFF0000
L_WQ, L_K, L_V, L_WO, EX = 0, 36864, 69632, 102400, 135168
EXL = 2688
X_XI, X_QI, X_PI, X_MI, X_LI, X_TR = 0, 576, 1856, 2496, 2560, 2112
L_PROG = EX + 4 * EXL
L_CONS = L_PROG + 64
L_GO = L_PROG + 128
LDS_TOTAL = EX + 11264
DPPM = "row_mask:0xf bank_mask:0xf"

def vr(b, n=1): return f"v{b}" if n == 1 else f"v[{b}:{b+n-1}]"

def gen(T=20, nt=True, stamps=False, fast=True, budget=400000, cprio=0, lprio=0, gate=2, w3=0, w6=0, sl1=0, sl3=0, sl6=0, pre=1, alb='sc1', asb='sc1', gsl=0):
    L = []
    A = L.append
    NT = " nt" if nt else ""
    KR = [8, 40]; VR = [24, 56]; WO = 72; TT = 104; ML = 136; D = 140; M = 148
    aAP, xold, aXW, aX, aWQ, aQS, aQL = 1, 2, 3, 4, 5, 6, 7
    aSTL, aQW, aQR, aPW, aMW, aPR, aMR, aOS, aOL, aML, aAS, aOUT, vST = 152, 153, 154, 155, 156, 157, 161, 162, 163, 164, 165, 166, 167
    WS = "s[8:11]"
    sL, sAP0, sAP1, sCS, sPass, sBud, sAPW, sNW, sFast = "s60", "s61", "s62", "s63", "s42", "s43", "s56", "s57", "s58"
    nst = [0]
    def stamp(i):
        if stamps: A(f"s_memrealtime s[{64+2*i}:{65+2*i}]")
    uid = [0]
    def lab(p):
        uid[0] += 1; return f"L_{p}_{uid[0]}"
    cold = []
    def retry(cond, target, sleep=0):
        s = lab("rt")
        A(f"s_cbranch_{cond} {s}")
        cold.append(f"{s}:")
        if sleep: cold.append(f"s_sleep {sleep}")
        cold.append(f"s_sub_u32 {sBud}, {sBud}, 1")
        cold.append(f"s_cbranch_scc0 {target}")
        cold.append("s_endpgm")
    def wait_prog(thr_sgpr, tmp):
        l = lab("wp")
        A(f"v_mov_b32 v{tmp}, {L_PROG}")
        A(f"{l}:")
        A(f"ds_read_b32 v{tmp+1}, v{tmp}")
        A("s_waitcnt lgkmcnt(0)")
        A(f"v_cmp_gt_i32 vcc, {thr_sgpr}, v{tmp+1}")
        retry("vccnz", l, sleep=1)
    def consumed(stage, tmp):
        A(f"s_lshl_b32 s7, s6, 2")
        A(f"s_add_u32 s7, s7, {L_CONS}")
        A(f"v_mov_b32 v{tmp}, s7")
        A(f"v_mov_b32 v{tmp+1}, {stage}")
        A(f"ds_write_b32 v{tmp}, v{tmp+1}")
    def gstore(ins, fastok):
        if fastok and fast:
            a, b = lab("sl"), lab("sd")
            A(f"s_cmp_eq_u32 {sFast}, 0")
            A(f"s_cbranch_scc1 {a}")
            A(ins)
            A(f"{b}:")
            cold.append(f"{a}:"); cold.append("s_nop 7"); cold.append(ins + " sc1"); cold.append(f"s_branch {b}")
        else:
            A(ins + " sc1")
    def red8(t):
        A(f"v_permlane32_swap_b32 v{t}, v{t+1}")
        A(f"v_permlane32_swap_b32 v{t+2}, v{t+3}")
        A(f"v_add_f32 v{t}, v{t}, v{t+1}")
        A(f"v_add_f32 v{t+2}, v{t+2}, v{t+3}")
        A(f"v_permlane16_swap_b32 v{t}, v{t+2}")
        A(f"v_add_f32 v{t}, v{t}, v{t+2}")
        A(f"v_add_f32_dpp v{t}, v{t}, v{t} row_ror:8 {DPPM}")
    OCT = ["quad_perm:[1,0,3,2]", "quad_perm:[2,3,0,1]", "row_half_mirror"]

    A(f"{NAME}_kernel:")
    stamp(0)
    A("s_cmp_ge_u32 s2, 256")
    A("s_cbranch_scc1 L_end")
    A("s_load_dwordx16 s[16:31], s[0:1], 0")
    A("s_load_dwordx8 s[32:39], s[0:1], 64")
    A("s_load_dwordx2 s[40:41], s[0:1], 96")
    A("v_lshrrev_b32 v1, 6, v0")
    A("v_and_b32 v0, 63, v0")
    A("v_readfirstlane_b32 s3, v1")
    A("s_and_b32 s4, s2, 7"); A("s_lshl_b32 s4, s4, 1"); A("s_lshr_b32 s5, s2, 7"); A("s_add_u32 s4, s4, s5")
    A("s_lshr_b32 s5, s2, 3"); A("s_and_b32 s5, s5, 15")
    A("s_cmp_ge_u32 s5, 14"); A(f"s_cselect_b32 {sNW}, 32, 16")
    A(f"s_mov_b32 {sBud}, {budget}")
    A("s_and_b32 s12, s5, 7")
    A("s_lshr_b32 s13, s5, 3")
    A("s_cmp_eq_u32 s3, 0")
    A("s_cbranch_scc0 L_compute")

    if stamps: A("s_memtime s[72:73]")
    if lprio: A(f"s_setprio {lprio}")
    A("v_lshrrev_b32 v1, 4, v0")
    A("v_and_b32 v2, 15, v0")
    A("v_lshlrev_b32 v3, 1, v1")
    A("v_xor_b32 v3, v3, v2")
    A("v_lshlrev_b32 v3, 4, v3")
    A("v_lshl_add_u32 v10, v1, 13, v3")
    A("v_xor_b32 v11, 0x80, v10")
    A("s_mul_i32 s60, s12, %d" % (72 * 8192))
    A("s_lshl_b32 s7, s4, 1"); A("s_add_u32 s7, s7, s13"); A("s_lshl_b32 s7, s7, 8"); A("s_add_u32 s60, s60, s7")
    A("s_mov_b32 s46, 4718592"); A("s_mov_b32 s47, 0x20000")
    A(f"v_mov_b32 v20, {L_PROG}")
    A(f"v_mov_b32 v21, {1 - T}")
    A("v_lshl_add_u32 v12, v1, 8, v3")
    A("v_xor_b32 v13, 0x80, v12")
    A("v_xor_b32 v3, v1, v2")
    A("v_lshlrev_b32 v3, 4, v3")
    A("v_lshl_add_u32 v14, v1, 8, v3")
    A("v_xor_b32 v15, 0x40, v14"); A("v_xor_b32 v16, 0x80, v14"); A("v_xor_b32 v17, 0xc0, v14")
    A("s_lshl_b32 s61, s13, 24"); A("s_lshl_b32 s7, s4, 20"); A("s_add_u32 s61, s61, s7")
    A("s_lshl_b32 s7, s12, 15"); A("s_add_u32 s61, s61, s7"); A("s_add_u32 s61, s61, %d" % (3072 * 256))
    A("s_mul_i32 s62, s4, %d" % (256 * 1152))
    A("s_lshl_b32 s7, s5, 6"); A("s_cmp_eq_u32 s5, 15"); A("s_cselect_b32 s7, 1024, s7"); A("s_add_u32 s62, s62, s7")
    A("v_lshrrev_b32 v4, 2, v0"); A("v_and_b32 v5, 3, v0"); A("v_lshrrev_b32 v6, 5, v0"); A("v_lshlrev_b32 v6, 1, v6")
    A("v_xor_b32 v5, v5, v6"); A("v_lshlrev_b32 v5, 4, v5"); A("v_mul_u32_u24 v4, 1152, v4"); A("v_add_u32 v18, v4, v5")
    A("v_mov_b32 v19, v18")
    A("s_mov_b32 s63, %d" % (16 * 1152))
    A("s_cmp_ge_u32 s5, 14")
    A("s_cbranch_scc0 L_ld_wo_done")
    A("v_lshrrev_b32 v4, 3, v0"); A("v_and_b32 v5, 7, v0"); A("v_and_b32 v6, 1, v1"); A("v_lshlrev_b32 v6, 1, v6")
    A("v_xor_b32 v5, v5, v6"); A("v_lshlrev_b32 v5, 4, v5"); A("v_mul_u32_u24 v4, 1152, v4"); A("v_add_u32 v18, v4, v5")
    A("v_xor_b32 v5, 0x40, v5"); A("v_add_u32 v19, v4, v5")
    A("s_mov_b32 s63, %d" % (8 * 1152))
    A("L_ld_wo_done:")
    for b in (50, 54): A(f"s_mov_b32 s{b}, 33554432"); A(f"s_mov_b32 s{b+1}, 0x20000")
    A("s_mov_b32 s58, 4718592"); A("s_mov_b32 s59, 0x20000")
    A(f"s_lshr_b32 s15, {sNW}, 2")
    A("v_and_b32 v22, 7, v0"); A("v_lshlrev_b32 v22, 2, v22"); A(f"v_add_u32 v22, {L_CONS}, v22")
    A("s_mov_b32 s42, 0")
    A("s_waitcnt lgkmcnt(0)")
    A("s_mov_b64 s[44:45], s[22:23]"); A("s_mov_b64 s[48:49], s[18:19]"); A("s_mov_b64 s[52:53], s[20:21]"); A("s_mov_b64 s[56:57], s[24:25]")
    A(f"s_mov_b32 s14, {L_WQ}")
    def ld(v, srd, step):
        A(f"s_waitcnt vmcnt({T-1})")
        A(f"buffer_load_dwordx4 v{v}, s[{srd}:{srd+3}], s96 offen{NT} lds")
        A("ds_write_b32 v20, v21")
        A(f"s_add_u32 s96, s96, {step}")
        A("s_add_u32 m0, m0, 1024")
        A("v_add_u32 v21, 1, v21")
    def seg(vs, srd, step, base, ldsb, iters):
        l = lab("seg")
        A(f"s_mov_b32 s96, {base}"); A(f"s_mov_b32 m0, {ldsb}"); A(f"s_mov_b32 s97, {iters}")
        A(f"{l}:")
        for v in vs: ld(v, srd, step)
        A("s_sub_u32 s97, s97, 1"); A("s_cmp_lg_u32 s97, 0"); A(f"s_cbranch_scc1 {l}")
    def wait_cons(stage):
        l, e = lab("wc"), lab("wce")
        A("s_cmp_eq_u32 s42, 0"); A(f"s_cbranch_scc1 {e}")
        A(f"{l}:")
        A("ds_read_b32 v23, v22"); A("s_waitcnt lgkmcnt(0)")
        A(f"v_cmp_gt_i32 vcc, {stage}, v23")
        retry("vccnz", l, sleep=1)
        A(f"{e}:")
    A("L_ld_loop:")
    seg([10, 10, 11, 11], 44, 32768, "s60", "s14", 4)
    ld(11, 44, 32768); ld(11, 44, 32768)
    A("s_cmp_eq_u32 s42, 0"); A("s_cbranch_scc0 L_ld_nobar"); A("s_barrier"); A("L_ld_nobar:")
    wait_cons(1)
    seg([14, 15, 16, 17], 48, 1024, "s61", L_K, 8)
    wait_cons(2)
    seg([12, 12, 13, 13], 52, 1024, "s61", L_V, 8)
    wait_cons(3)
    seg([18, 19, 18, 19], 56, "s63", "s62", L_WO, "s15")
    A("s_cmp_eq_u32 s42, 0"); A("s_cbranch_scc0 L_ld_drain")
    stamp(1)
    A("s_mov_b32 s42, 1")
    A("s_mov_b64 s[44:45], s[32:33]"); A("s_mov_b64 s[48:49], s[28:29]"); A("s_mov_b64 s[52:53], s[30:31]"); A("s_mov_b64 s[56:57], s[34:35]")
    A(f"s_mov_b32 s14, {L_WQ + 18432}")
    A("s_branch L_ld_loop")
    A("L_ld_drain:")
    stamp(2)
    for k in range(T - 1, -1, -1):
        A(f"s_waitcnt vmcnt({k})"); A("ds_write_b32 v20, v21"); A("v_add_u32 v21, 1, v21")
    stamp(3)
    if stamps:
        A("s_memtime s[74:75]")
        A("s_waitcnt lgkmcnt(0)")
        A("s_sub_u32 s72, s74, s72"); A("s_add_u32 s72, s72, s64")
        A(f"v_mov_b32 v{vST}, 0")
        for i in range(5): A(f"v_writelane_b32 v{vST}, s{64+2*i}, {i}")
        A("s_branch L_stamps")
    A("s_waitcnt lgkmcnt(0)")
    A("s_endpgm")

    A("L_compute:")
    if cprio: A(f"s_setprio {cprio}")
    t = TT
    A("s_memrealtime s[52:53]")
    A("s_sub_u32 s6, s3, 1")
    for i in range(4): A(f"v_mov_b32 v{D+i}, -1")
    A("s_lshl_b32 s7, s6, 10")
    A(f"v_lshl_add_u32 v{t}, v0, 4, s7")
    A(f"v_add_u32 v{t+1}, {EX}, v{t}")
    A(f"ds_write_b128 v{t+1}, {vr(D,4)}")
    A("s_cmp_lt_u32 s6, 3"); A("s_cbranch_scc0 L_fill2")
    A(f"ds_write_b128 v{t+1}, {vr(D,4)} offset:8192")
    A("L_fill2:")
    n_, G_, q4, p_, idx = t+2, t+3, t+4, t+5, t+6
    A(f"v_and_b32 v{n_}, 15, v0"); A(f"v_lshrrev_b32 v{G_}, 4, v0"); A(f"v_and_b32 v{q4}, 7, v0"); A(f"v_lshrrev_b32 v{p_}, 3, v0")
    A(f"v_and_b32 v{idx}, 1, v{G_}"); A(f"v_lshlrev_b32 v{idx}, 1, v{idx}"); A(f"v_lshrrev_b32 v{t+7}, 5, v0"); A(f"v_add_u32 v{idx}, v{idx}, v{t+7}")
    A("s_lshl_b32 s7, s4, 4"); A("s_add_u32 s59, s7, s5")
    A(f"s_mul_i32 s96, s4, {GS}")
    A("s_lshr_b32 s97, s6, 2")
    A("s_and_b32 s98, s6, 3")
    A("s_mul_i32 s99, s98, 9"); A("s_add_u32 s99, s99, 1"); A("s_lshr_b32 s99, s99, 1")
    A("s_and_b32 s100, s98, 1"); A("s_sub_u32 s100, 5, s100")
    A(f"v_cmp_gt_u32 s[14:15], s100, v{q4}")
    A(f"v_add_u32 v{t+7}, s99, v{q4}"); A(f"v_lshlrev_b32 v{t+7}, 2, v{t+7}")
    A(f"v_add_u32 v{t+8}, v{t+7}, v{idx}")
    A("s_mul_i32 s7, s12, 72")
    A(f"v_add_u32 v{t+7}, s7, v{t+7}")
    A("s_mul_i32 s101, s97, 576"); A("s_add_u32 s7, s7, s101")
    A(f"v_add_u32 v{t+9}, s7, v{t+8}"); A(f"v_lshlrev_b32 v{t+9}, 1, v{t+9}")
    A(f"v_mov_b32 v{t+10}, {OOBV}"); A(f"v_mov_b32 v{M}, 0")
    A(f"v_cndmask_b32 v{aOUT}, v{t+10}, v{t+9}, s[14:15]")
    A("s_waitcnt lgkmcnt(0)")
    A("s_mov_b64 s[8:9], s[40:41]"); A("s_mov_b32 s10, 268435456"); A("s_mov_b32 s11, 0x20000")
    A("s_mov_b64 s[44:45], s[16:17]"); A("s_mov_b32 s46, 2304"); A("s_mov_b32 s47, 0x20000")
    A("s_mov_b64 s[48:49], s[38:39]"); A("s_mov_b32 s50, 256"); A("s_mov_b32 s51, 0x20000")
    A("s_lshl_b32 s7, s59, 3"); A("s_add_u32 s7, s7, s6"); A("s_cmp_eq_u32 s7, 6"); A("s_cbranch_scc0 L_nononce")
    A("s_or_b32 s52, s52, 1"); A(f"v_mov_b32 v{M+1}, s52")
    A("s_mov_b64 exec, 1")
    A(f"buffer_store_dword v{M+1}, v{M}, s[48:51], 0 offen sc1")
    A("s_mov_b64 exec, -1")
    A("L_nononce:")
    A(f"buffer_load_ushort v{xold}, v{aOUT}, s[44:47], 0 offen")
    A("s_cmp_eq_u32 s6, 7"); A("s_cbranch_scc0 L_noclear")
    A(f"v_lshlrev_b32 v{t}, 4, v0")
    A(f"s_mul_i32 s7, s5, {GL // 4}"); A("s_add_u32 s7, s7, s96")
    for i in range(8):
        A(f"buffer_store_dwordx4 {vr(D,4)}, v{t}, {WS}, s7 offen offset:{(i%4)*1024} sc1")
        if i % 4 == 3: A("s_add_u32 s7, s7, 4096")
    A(f"s_mul_i32 s101, s59, {APL // 64}"); A(f"s_add_u32 s101, s101, {APB}")
    A(f"buffer_store_dwordx4 {vr(D,4)}, v{t}, {WS}, s101 offen sc1")
    A("s_mov_b64 exec, 0xff")
    A(f"buffer_store_dwordx4 {vr(D,4)}, v{t}, {WS}, s7 offen sc1")
    A(f"buffer_store_dwordx4 {vr(D,4)}, v{t}, {WS}, s101 offen offset:1024 sc1")
    A("s_mov_b64 exec, -1")
    A(f"buffer_load_dword v{ML}, v{M}, s[48:51], 0 offen sc1")
    A("L_noclear:")
    A("s_barrier")
    A("s_mov_b64 s[52:53], s[36:37]"); A("s_mov_b32 s54, 2304"); A("s_mov_b32 s55, 0x20000")
    A("s_cmp_lt_u32 s6, 4"); A("s_cbranch_scc0 L_const_done")
    A(f"s_mul_i32 s7, s6, {EXL}"); A(f"s_add_u32 s7, s7, {EX}")
    A(f"v_lshlrev_b32 v{t+11}, 4, v0")
    A(f"v_mov_b32 v{t+12}, {384 - 96}"); A(f"v_mov_b32 v{t+13}, {320 - 48}")
    A("v_cmp_gt_u32 vcc, 6, v0"); A(f"v_cndmask_b32 v{t+12}, v{t+12}, v{t+13}, vcc")
    A(f"v_mov_b32 v{t+13}, 128")
    A("v_cmp_gt_u32 vcc, 3, v0"); A(f"v_cndmask_b32 v{t+12}, v{t+12}, v{t+13}, vcc")
    A(f"v_add3_u32 v{t+11}, v{t+11}, v{t+12}, s7")
    A(f"v_mov_b32 v{t+12}, 0")
    A("s_mov_b64 exec, 0x23fc0")
    A(f"v_mov_b32 v{t+12}, 0x3f803f80")
    A("s_mov_b64 exec, 0x3ffff")
    for i in range(1, 4): A(f"v_mov_b32 v{t+12+i}, v{t+12}")
    A(f"ds_write_b128 v{t+11}, {vr(t+12,4)}")
    A("s_mov_b64 exec, -1")
    A("L_const_done:")
    u = t + 16
    A("s_lshl_b32 s7, s12, 1"); A("s_add_u32 s7, s7, s97"); A("s_mul_i32 s7, s7, 4608"); A("s_lshl_b32 s101, s99, 8"); A("s_add_u32 s7, s7, s101")
    A(f"v_mul_u32_u24 v{u}, s100, v{p_}"); A(f"v_add_u32 v{u}, v{u}, v{q4}"); A(f"v_lshl_add_u32 v{u}, v{u}, 4, s7")
    A(f"v_cndmask_b32 v{aAP}, v{t+10}, v{u}, s[14:15]")
    A(f"s_mov_b32 {sAP0}, {APB - APL}"); A(f"s_lshl_b32 {sAP1}, s100, 7"); A(f"s_add_u32 {sAP1}, {sAP1}, {sAP0}"); A(f"s_mov_b32 {sAPW}, {APB}")
    A(f"v_add_u32 v{u}, 24, v{t+8}"); A(f"v_cmp_gt_u32 vcc, 64, v{t+8}"); A(f"v_cndmask_b32 v{u}, v{u}, v{t+8}, vcc")
    A("s_mul_i32 s7, s97, 192"); A(f"s_add_u32 s7, s7, {EX + X_XI}")
    A(f"v_lshl_add_u32 v{u}, v{u}, 1, s7")
    A(f"v_mov_b32 v{u+1}, {EX + X_TR}")
    A(f"v_cndmask_b32 v{aXW}, v{u+1}, v{u}, s[14:15]")
    n4, n3 = u + 4, u + 5
    A(f"v_lshrrev_b32 v{n4}, 2, v{n_}"); A(f"v_and_b32 v{n3}, 3, v{n_}")
    G1, G2 = u + 6, u + 7
    A(f"v_and_b32 v{G1}, 1, v{G_}"); A(f"v_lshrrev_b32 v{G2}, 1, v{G_}")
    A(f"v_and_b32 v{u}, 1, v{n4}"); A(f"v_mul_u32_u24 v{u+1}, 192, v{u}"); A(f"v_mov_b32 v{u+2}, 384")
    A(f"v_cmp_eq_u32 vcc, 0, v{n3}"); A(f"v_cndmask_b32 v{u+1}, v{u+2}, v{u+1}, vcc")
    A(f"v_lshl_add_u32 v{u+1}, v{G_}, 4, v{u+1}"); A(f"v_add_u32 v{aX}, {EX + X_XI}, v{u+1}")
    A(f"v_mul_u32_u24 v{u+1}, 320, v{u}"); A(f"v_add_u32 v{u+2}, 640, v{u+1}")
    A(f"v_cmp_eq_u32 vcc, 1, v{n3}"); A(f"v_cndmask_b32 v{u+1}, v{u+1}, v{u+2}, vcc")
    A(f"v_lshl_add_u32 v{u+1}, v{G_}, 4, v{u+1}"); A(f"v_add_u32 v{aQR}, {EX + X_QI}, v{u+1}")
    A(f"v_lshl_add_u32 v{u}, v{G_}, 3, v{n4}"); A(f"v_lshlrev_b32 v{u}, 8, v{u}")
    A(f"v_lshl_or_b32 v{u+1}, v{G1}, 2, v{n4}"); A(f"v_xor_b32 v{u+1}, s6, v{u+1}")
    A(f"v_lshl_add_u32 v{u}, v{u+1}, 5, v{u}"); A(f"v_lshl_add_u32 v{aWQ}, v{n3}, 3, v{u}")
    A("s_lshl_b32 s7, s13, 12"); A("s_lshr_b32 s101, s6, 1"); A("s_lshl_b32 s101, s101, 10"); A("s_add_u32 s7, s7, s101")
    A("s_lshl_b32 s101, s12, 7"); A("s_add_u32 s7, s7, s101"); A("s_and_b32 s101, s6, 1"); A("s_lshl_b32 s101, s101, 6"); A("s_add_u32 s7, s7, s101")
    A(f"v_lshl_add_u32 v{u}, v{G_}, 4, s7")
    A(f"v_mov_b32 v{aQS}, v{t+10}")
    A(f"v_cmp_eq_u32 vcc, 0, v{n_}"); A(f"v_cndmask_b32 v{aQS}, v{aQS}, v{u}, vcc")
    A(f"v_add_u32 v{u}, 8192, v{u}"); A(f"v_cmp_eq_u32 vcc, 4, v{n_}"); A(f"v_cndmask_b32 v{aQS}, v{aQS}, v{u}, vcc")
    A(f"v_add_u32 v{u}, 8192, v{u}"); A(f"v_cmp_eq_u32 vcc, 1, v{n_}"); A(f"v_cndmask_b32 v{aQS}, v{aQS}, v{u}, vcc")
    A("s_lshl_b32 s7, s13, 13"); A("s_lshl_b32 s101, s6, 10"); A("s_add_u32 s7, s7, s101")
    A(f"v_lshl_add_u32 v{aQL}, v0, 4, s7")
    A("s_lshl_b32 s7, s13, 6"); A(f"s_add_u32 s7, s7, {G_ST}")
    A(f"v_lshl_add_u32 v{aSTL}, v{q4}, 3, s7")
    A("s_mul_i32 s7, s97, 320"); A("s_lshl_b32 s101, s98, 6"); A("s_add_u32 s7, s7, s101"); A(f"s_add_u32 s7, s7, {EX + X_QI}")
    A(f"v_lshl_add_u32 v{u}, v{q4}, 2, v{idx}"); A(f"v_lshl_add_u32 v{aQW}, v{u}, 1, s7")
    A("s_lshl_b32 s7, s6, 5"); A(f"s_add_u32 s7, s7, {EX + X_PI}")
    A(f"v_mul_u32_u24 v{u}, 320, v{G1}"); A(f"v_lshl_add_u32 v{u}, v{n_}, 1, v{u}"); A(f"v_add_u32 v{aPW}, s7, v{u}")
    A("s_lshl_b32 s7, s6, 2"); A(f"s_add_u32 s7, s7, {EX + X_MI}")
    A(f"v_lshl_add_u32 v{aMW}, v{G1}, 5, s7")
    A(f"v_lshrrev_b32 v{u}, 3, v{n_}"); A(f"v_mul_u32_u24 v{u}, 320, v{u}"); A(f"v_lshl_add_u32 v{u}, v{q4}, 5, v{u}")
    A(f"v_lshl_add_u32 v{u}, v{G1}, 4, v{u}"); A(f"v_add_u32 v{u}, {EX + X_PI}, v{u}")
    A(f"v_mov_b32 v{u+1}, {EX + X_XI + 128}")
    A(f"v_xor_b32 v{u+2}, v{q4}, v{G2}")
    for s in range(4):
        A(f"v_cmp_eq_u32 vcc, {2*s}, v{u+2}"); A(f"v_cndmask_b32 v{aPR+s}, v{u+1}, v{u}, vcc")
    A(f"v_lshl_add_u32 v{u}, v{G1}, 2, v{n_}"); A(f"v_and_b32 v{u}, 7, v{u}"); A(f"v_lshl_add_u32 v{u}, v{G2}, 3, v{u}")
    A(f"v_lshlrev_b32 v{u+1}, 2, v{u}"); A(f"v_add_u32 v{aMR}, {EX + X_MI}, v{u+1}")
    A(f"v_lshlrev_b32 v{u}, 4, v{u}"); A(f"v_add_u32 v{aML}, {G_ML}, v{u}")
    A(f"v_cmp_eq_u32 s[14:15], 0, v{G1}")
    A("s_lshl_b32 s7, s6, 9"); A("s_lshl_b32 s101, s5, 4"); A("s_add_u32 s7, s7, s101"); A(f"s_add_u32 s7, s7, {G_OP}")
    A(f"v_lshlrev_b32 v{u}, 12, v{G2}"); A(f"v_lshrrev_b32 v{u+1}, 3, v{n_}"); A(f"v_lshl_add_u32 v{u}, v{u+1}, 8, v{u}")
    A(f"v_lshl_add_u32 v{u}, v{q4}, 1, v{u}"); A(f"v_add_u32 v{u}, s7, v{u}")
    A(f"v_cndmask_b32 v{aOS}, v{t+10}, v{u}, s[14:15]")
    A("s_lshl_b32 s7, s5, 5"); A("s_cmp_eq_u32 s5, 15"); A("s_cselect_b32 s7, 512, s7"); A("s_lshl_b32 s101, s98, 4"); A("s_add_u32 s7, s7, s101")
    A(f"v_add_u32 v{u}, s7, v{n_}")
    A(f"v_mul_u32_u24 v{u+1}, 911, v{u}"); A(f"v_lshrrev_b32 v{u+1}, 16, v{u+1}")
    A(f"v_mul_u32_u24 v{u+2}, 72, v{u+1}"); A(f"v_sub_u32 v{u}, v{u}, v{u+2}")
    A(f"v_lshl_add_u32 v{u+1}, v{u+1}, 1, v{G2}"); A(f"v_mul_u32_u24 v{u+1}, 4608, v{u+1}")
    A(f"v_lshl_add_u32 v{u+1}, v{u}, 2, v{u+1}")
    A("s_mul_i32 s7, s4, 80"); A(f"v_mov_b32 v{u+2}, s7")
    for lim, qs, cnt in ((20, 5, 4), (36, 9, 5), (56, 14, 4)):
        A(f"s_mul_i32 s7, s4, {16*cnt}"); A(f"s_add_u32 s7, s7, {240*qs}"); A(f"v_mov_b32 v{u+3}, s7")
        A(f"v_cmp_le_u32 vcc, {lim}, v{u}"); A(f"v_cndmask_b32 v{u+2}, v{u+2}, v{u+3}, vcc")
    A(f"v_add_u32 v{u+1}, v{u+1}, v{u+2}")
    A(f"v_cndmask_b32 v{aAS}, v{t+10}, v{u+1}, s[14:15]")
    A(f"v_lshlrev_b32 v{u}, 4, v0"); A(f"v_add_u32 v{aOL}, {G_OP}, v{u}")
    A(f"s_mov_b32 {sPass}, 0"); A(f"s_mov_b32 {sL}, s96"); A(f"s_add_u32 s96, s96, 4096")
    A(f"s_lshl_b32 s7, s13, 13"); A(f"s_sub_u32 {sCS}, {G_CS}, s7"); A(f"s_add_u32 {sCS}, {sCS}, {sL}")
    A(f"s_lshr_b32 s7, {sNW}, 3"); A("s_cmp_lt_u32 s98, s7"); A("s_cselect_b32 s15, s97, 2")
    A("s_mov_b32 s98, 1"); A("s_mov_b32 s99, 1")
    A("s_mov_b32 s100, 0x3ae38e39")
    A("s_mov_b32 s101, 0x3e0293ee")
    if stamps: A(f"v_mov_b32 v{vST}, 0")
    A("s_waitcnt vmcnt(0)")
    A(f"ds_write_b16 v{aXW}, v{xold}")
    A(f"v_lshlrev_b32 v{xold}, 16, v{xold}")
    stamp(1)
    A("s_cmp_eq_u32 s6, 7"); A("s_cbranch_scc0 L_noflag")
    A("L_nonce:")
    A(f"v_cmp_eq_u32 vcc, 0, v{ML}")
    retry("vccnz", "L_noncer", sleep=2)
    cold.append("L_noncer:"); cold.append(f"buffer_load_dword v{ML}, v{M}, s[48:51], 0 offen sc1"); cold.append("s_waitcnt vmcnt(0)"); cold.append("s_branch L_nonce")
    A("s_getreg_b32 s7, hwreg(HW_REG_XCC_ID)"); A(f"v_mov_b32 v{ML+1}, s7")
    A("s_lshl_b32 s14, s59, 7"); A(f"s_add_u32 s14, s14, {FLB}")
    A("s_mov_b64 exec, 1")
    A(f"buffer_store_dwordx2 {vr(ML,2)}, v{M}, {WS}, s14 offen sc1")
    A("s_mov_b64 exec, -1")
    A(f"v_and_b32 v{M}, 15, v0"); A(f"v_lshlrev_b32 v{M}, 7, v{M}")
    if pre:
        A(f"v_lshlrev_b32 v{M+1}, 7, v0")
        A(f"s_mul_i32 s14, s5, {GL // 4}"); A(f"s_add_u32 s14, s14, {sL}")
        A(f"buffer_load_dword v{t}, v{M+1}, {WS}, s14 offen sc1")
        A(f"buffer_load_dword v{t+1}, v{M+1}, {WS}, s14 offen offset:128 sc1")
    A("s_lshl_b32 s14, s4, 11"); A(f"s_add_u32 s14, s14, {FLB}")
    A("L_gc0:")
    A(f"buffer_load_dwordx2 {vr(ML+2,2)}, v{M}, {WS}, s14 offen sc1")
    A("s_waitcnt vmcnt(0)")
    A(f"v_cmp_ne_u32 vcc, v{ML}, v{ML+2}")
    retry("vccnz", "L_gc0", sleep=2)
    A(f"v_cmp_ne_u32 vcc, v{ML+1}, v{ML+3}")
    A("s_cmp_eq_u64 vcc, 0")
    A(f"s_cselect_b32 {sFast}, 1, 0")
    A(f"v_mov_b32 v{M}, {L_GO}"); A(f"v_mov_b32 v{M+1}, {sFast}")
    A(f"ds_write_b32 v{M}, v{M+1}")
    A("s_cmp_eq_u32 s5, 0"); A("s_cbranch_scc0 L_flagdone")
    A("s_lshl_b32 s14, s4, 2"); A(f"v_mov_b32 v{M}, s14")
    A("s_mov_b64 exec, 1")
    A(f"buffer_store_dword v{ML}, v{M}, s[48:51], 0 offen offset:128 sc1")
    A("s_mov_b64 exec, -1")
    A("s_branch L_flagdone")
    A("L_noflag:")
    A(f"v_mov_b32 v{M}, {L_GO}")
    A("L_gow:")
    A(f"ds_read_b32 v{M+1}, v{M}")
    A("s_waitcnt lgkmcnt(0)")
    A(f"v_readfirstlane_b32 {sFast}, v{M+1}")
    A(f"s_cmp_lt_i32 {sFast}, 0")
    retry("scc1", "L_gow", sleep=2)
    A("L_flagdone:")
    stamp(2)
    WQT = TT + 16
    def wq_reads(tau):
        for s in range(3):
            for h in range(2):
                off = tau * 18432 + (s * 8192 if s < 2 else 10240) + h * 1024
                A(f"ds_read_b64_tr_b16 {vr(WQT + 4*s + 2*h, 2)}, v{aWQ} offset:{off}")
    A("s_mov_b32 s14, 18")
    wait_prog("s14", M)
    wq_reads(0)
    A("s_branch L_P2_0")

    def p1_core(t):
        A("s_waitcnt vmcnt(0)")
        A(f"v_pk_add_f32 {vr(t,2)}, {vr(t,2)}, {vr(t+4,2)}")
        A(f"v_pk_add_f32 {vr(t+2,2)}, {vr(t+2,2)}, {vr(t+6,2)}")
        red8(t)
        A(f"v_add_f32 v{t}, v{t}, v{xold}")
        A(f"v_cvt_pk_bf16_f32 v{t+1}, v{t}, v{t}")
    def p1_loads(t):
        A(f"buffer_load_dwordx4 {vr(t,4)}, v{aAP}, {WS}, {sAP0} offen {alb}")
        A(f"buffer_load_dwordx4 {vr(t+4,4)}, v{aAP}, {WS}, {sAP1} offen {alb}")
    def next_layer():
        A(f"s_add_u32 {sAP0}, {sAP0}, {APL}"); A(f"s_add_u32 {sAP1}, {sAP1}, {APL}"); A(f"s_add_u32 {sAPW}, {sAPW}, {APL}")
        A(f"s_add_u32 {sL}, {sL}, {GL}"); A(f"s_add_u32 {sCS}, {sCS}, {GL}"); A(f"s_add_u32 s96, s96, {GL}")

    for tau in range(2):
        E = tau * EXL
        sb = 2 + 7 * tau
        K, V = KR[tau], VR[tau]
        A(f"L_P1_{tau}:")
        p1_loads(t)
        if tau == 1:
            sk = lab("sk")
            A(f"s_cmp_eq_u32 {sPass}, 0"); A(f"s_cbranch_scc0 {sk}")
            A(f"s_add_u32 s14, {sNW}, 100")
            wait_prog("s14", M)
            A(f"{sk}:")
        wq_reads(tau)
        A(f"L_P1w_{tau}:")
        p1_core(t)
        A(f"ds_write_b16 v{aXW}, v{t+1} offset:{E}")
        A(f"v_cmp_u_f32 vcc, v{t}, v{t}")
        retry("vccnz", f"L_P1r_{tau}", sleep=sl1)
        cold.append(f"L_P1r_{tau}:")
        cold.append(f"buffer_load_dwordx4 {vr(t,4)}, v{aAP}, {WS}, {sAP0} offen {alb}")
        cold.append(f"buffer_load_dwordx4 {vr(t+4,4)}, v{aAP}, {WS}, {sAP1} offen {alb}")
        cold.append(f"s_branch L_P1w_{tau}")
        A(f"v_mov_b32 v{xold}, v{t}")
        stamp(sb)
        A(f"L_P2_{tau}:")
        for s in range(3): A(f"ds_read_b128 {vr(t+4*s,4)}, v{aX} offset:{E + 64*s}")
        for s in range(3):
            A(f"s_waitcnt lgkmcnt({0 if stamps else 2-s})")
            A(f"v_mfma_f32_16x16x32_bf16 {vr(D,4)}, {vr(WQT+4*s,4)}, {vr(t+4*s,4)}, {0 if s == 0 else vr(D,4)}")
        gstore(f"buffer_store_dwordx4 {vr(D,4)}, v{aQS}, {WS}, {sL} offen", True)
        A(f"v_cmp_u_f32 vcc, v{D}, v{D}")
        retry("vccnz", f"L_P2_{tau}")
        sk = lab("sk")
        A("s_add_u32 s7, s6, s13"); A("s_cmp_eq_u32 s7, 0"); A(f"s_cbranch_scc0 {sk}")
        for s in range(3):
            A(f"v_mfma_f32_16x16x32_bf16 {vr(D+4,4)}, {vr(t+4*s,4)}, {vr(t+4*s,4)}, {0 if s == 0 else vr(D+4,4)}")
        A("s_lshl_b32 s7, s12, 3"); A(f"s_add_u32 s7, s7, {G_ST}")
        A(f"v_lshlrev_b32 v{M}, 2, v0"); A(f"v_and_b32 v{M}, 64, v{M}"); A(f"v_add_u32 v{M}, s7, v{M}")
        A("s_mov_b64 exec, 0x100001")
        gstore(f"buffer_store_dwordx2 {vr(D+4,2)}, v{M}, {WS}, {sL} offen", True)
        A("s_mov_b64 exec, -1")
        A(f"{sk}:")
        stamp(sb + 1)
        if w3: A("s_waitcnt vmcnt(0)")
        A(f"L_P3_{tau}:")
        A(f"buffer_load_dwordx4 {vr(t,4)}, v{aQL}, {WS}, {sL} offen sc1")
        A(f"buffer_load_dwordx2 {vr(t+4,2)}, v{aSTL}, {WS}, {sL} offen sc1")
        sk = lab("sk")
        A(f"s_cmp_eq_u32 {sPass}, 0"); A(f"s_cbranch_scc0 {sk}")
        A(f"buffer_load_dwordx4 {vr(t+8,4)}, v{aQL}, {WS}, {sCS} offen sc1")
        A(f"{sk}:")
        A("s_waitcnt vmcnt(0)")
        red8(t)
        A(f"v_cvt_pk_bf16_f32 v{t+1}, v{t}, v{t}")
        A(f"ds_write_b16 v{aQW}, v{t+1} offset:{E}")
        for o in OCT:
            A(f"v_add_f32_dpp v{t+4}, v{t+4}, v{t+4} {o} {DPPM}")
            A(f"v_add_f32_dpp v{t+5}, v{t+5}, v{t+5} {o} {DPPM}")
        sk = lab("sk")
        A(f"s_cbranch_scc0 {sk}")
        red8(t + 8)
        A(f"v_cvt_pk_bf16_f32 v{t+9}, v{t+8}, v{t+8}")
        A(f"ds_write_b16 v{aQW}, v{t+9} offset:{E + 640}")
        A(f"ds_write_b16 v{aQW}, v{t+9} offset:{E + 640 + 2*EXL}")
        A(f"v_add_f32 v{t}, v{t}, v{t+8}")
        A(f"{sk}:")
        al, be = M + 2, M + 3
        A(f"v_mul_f32 v{t+5}, s100, v{t+5}")
        A(f"v_mul_f32 v{t+6}, v{t+5}, v{t+5}")
        A(f"v_fma_f32 v{t+4}, v{t+4}, s100, -v{t+6}")
        A(f"v_cmp_u_f32 vcc, v{t}, v{t+4}")
        retry("vccnz", f"L_P3_{tau}", sleep=sl3)
        A(f"v_max_f32 v{t+4}, 0, v{t+4}")
        A(f"v_add_f32 v{t+4}, 0x3727c5ac, v{t+4}")
        A(f"v_rsq_f32 v{t+4}, v{t+4}")
        A(f"v_mul_f32 v{al}, s101, v{t+4}")
        A(f"v_mul_f32 v{be}, -v{t+5}, v{al}")
        stamp(sb + 2)
        sk = lab("sk")
        A(f"s_cmp_eq_u32 {sPass}, 0"); A(f"s_cbranch_scc0 {sk}")
        A(f"s_lshl_b32 s14, s6, 2"); A(f"s_add_u32 s14, s14, {22 if tau == 0 else 104}")
        if tau: A(f"s_add_u32 s14, s14, {sNW}")
        wait_prog("s14", M)
        A(f"v_and_b32 v{t}, 15, v0"); A(f"v_lshrrev_b32 v{t+1}, 4, v0"); A(f"v_xor_b32 v{t+1}, v{t+1}, v{t}")
        A(f"v_lshlrev_b32 v{t}, 8, v{t}"); A(f"v_lshl_add_u32 v{t}, v{t+1}, 4, v{t}")
        A(f"s_lshl_b32 s7, s6, 12"); A(f"s_add_u32 s7, s7, {L_K}"); A(f"v_add_u32 v{t}, s7, v{t}")
        for s in range(1, 4): A(f"v_xor_b32 v{t+s}, {64*s}, v{t}")
        for s in range(4): A(f"ds_read_b128 {vr(K+4*s,4)}, v{t+s}")
        A("s_waitcnt lgkmcnt(0)")
        if tau == 0: consumed(1, M)
        A(f"{sk}:")
        A(f"L_P4_{tau}:")
        for s in range(4): A(f"ds_read_b128 {vr(t+4*s,4)}, v{aQR} offset:{E + 64*s}")
        for s in range(4):
            A(f"s_waitcnt lgkmcnt({0 if stamps else 3-s})")
            A(f"v_mfma_f32_16x16x32_bf16 {vr(D,4)}, {vr(t+4*s,4)}, {vr(K+4*s,4)}, {0 if s == 0 else vr(D,4)}")
        x = t + 16
        A(f"v_mul_f32 v{x}, v{be}, v{D+1}")
        A(f"v_fmac_f32 v{x}, v{al}, v{D}")
        A(f"v_max_f32_dpp v{x+1}, v{x}, v{x} {OCT[0]} {DPPM}")
        A(f"v_max_f32_dpp v{x+1}, v{x+1}, v{x+1} {OCT[1]} {DPPM}")
        A(f"v_max_f32_dpp v{x+1}, v{x+1}, v{x+1} {OCT[2]} {DPPM}")
        A(f"v_max_f32_dpp v{x+1}, v{x+1}, v{x+1} row_ror:8 {DPPM}")
        A(f"v_sub_f32 v{x+2}, v{x}, v{x+1}")
        A(f"v_exp_f32 v{x+2}, v{x+2}")
        A(f"ds_write_b32 v{aMW}, v{x+1} offset:{E}")
        A(f"v_cvt_pk_bf16_f32 v{x+3}, v{x+2}, v{x+2}")
        A(f"ds_write_b16 v{aPW}, v{x+3} offset:{E}")
        A(f"v_cmp_u_f32 vcc, v{x}, v{x}")
        retry("vccnz", f"L_P4_{tau}")
        for o in OCT + ["row_ror:8"]:
            A(f"v_add_f32_dpp v{x+2}, v{x+2}, v{x+2} {o} {DPPM}")
        A(f"ds_write_b32 v{aMW}, v{x+2} offset:{E + 64}")
        stamp(sb + 3)
        sk = lab("sk")
        A(f"s_cmp_eq_u32 {sPass}, 0"); A(f"s_cbranch_scc0 {sk}")
        if tau == 0:
            l, s2 = lab("gc"), lab("sk")
            A("s_cmp_eq_u32 s15, 0"); A(f"s_cbranch_scc0 {s2}")
            A(f"v_and_b32 v{M}, 15, v0"); A(f"v_lshlrev_b32 v{M}, 2, v{M}")
            A(f"{l}:")
            A(f"buffer_load_dword v{M+1}, v{M}, s[48:51], 0 offen offset:128 sc1")
            A("s_waitcnt vmcnt(0)")
            A(f"v_cmp_eq_u32 vcc, 0, v{M+1}")
            retry("vccnz", l, sleep=4)
            A(f"{s2}:")
            A("s_mov_b32 s14, 82")
        else:
            A(f"s_add_u32 s14, {sNW}, 164")
        wait_prog("s14", M)
        A(f"v_add_u32 v{M}, {L_V}, v{aWQ}")
        for s in range(4):
            for h in range(2):
                A(f"ds_read_b64_tr_b16 {vr(V + 4*s + 2*h, 2)}, v{M} offset:{s*8192 + h*1024}")
        A("s_waitcnt lgkmcnt(0)")
        if tau == 0: consumed(2, M)
        A(f"{sk}:")
        A(f"L_P5_{tau}:")
        A(f"ds_read_b32 v{x}, v{aMR} offset:{E}")
        for s in range(4): A(f"ds_read_b128 {vr(t+4*s,4)}, v{aPR+s} offset:{E}")
        fill = [f"v_max_f32_dpp v{x+1}, v{x}, v{x} {OCT[0]} {DPPM}",
                f"v_max_f32_dpp v{x+1}, v{x+1}, v{x+1} {OCT[1]} {DPPM}",
                f"v_max_f32_dpp v{x+1}, v{x+1}, v{x+1} {OCT[2]} {DPPM}",
                f"v_sub_f32 v{x+2}, v{x}, v{x+1}"]
        for s in range(4):
            A(f"s_waitcnt lgkmcnt({0 if stamps else 3-s})")
            A(f"v_mfma_f32_16x16x32_bf16 {vr(D,4)}, {vr(t+4*s,4)}, {vr(V+4*s,4)}, {0 if s == 0 else vr(D,4)}")
            A(fill[s])
        A(f"v_exp_f32 v{x+2}, v{x+2}")
        A(f"ds_read_b32 v{x+5}, v{aMR} offset:{E + 64}")
        A(f"v_mul_f32_dpp v{x+3}, v{x+2}, v{D} row_newbcast:0 {DPPM}")
        A(f"v_mul_f32_dpp v{x+4}, v{x+2}, v{D+1} row_newbcast:1 {DPPM}")
        A(f"v_fmac_f32_dpp v{x+3}, v{x+2}, v{D+2} row_newbcast:2 {DPPM}")
        A(f"v_fmac_f32_dpp v{x+4}, v{x+2}, v{D+3} row_newbcast:3 {DPPM}")
        A(f"v_add_f32 v{x+3}, v{x+3}, v{x+4}")
        A(f"v_mov_b32 v{x+4}, v{x+3}")
        A(f"v_permlane16_swap_b32 v{x+3}, v{x+4}")
        A(f"v_add_f32 v{x+3}, v{x+3}, v{x+4}")
        A(f"v_cvt_pk_bf16_f32 v{x+4}, v{x+3}, v{x+3}")
        gstore(f"buffer_store_short v{x+4}, v{aOS}, {WS}, {sL} offen", True)
        A(f"v_cmp_u_f32 vcc, v{x+3}, v{x+3}")
        retry("vccnz", f"L_P5_{tau}")
        sk, l = lab("sk"), lab("ml")
        A("s_cmp_eq_u32 s6, 0"); A(f"s_cbranch_scc0 {sk}")
        A("s_lshl_b32 s7, s5, 4"); A(f"s_add_u32 s7, s7, {G_ML}"); A(f"v_lshrrev_b32 v{M}, 2, v0"); A(f"v_add_u32 v{M}, s7, v{M}")
        A(f"v_mov_b32 v{x+6}, v{x+1}")
        A(f"{l}:")
        A("s_waitcnt lgkmcnt(0)")
        A(f"v_mul_f32 v{x+7}, v{x+5}, v{x+2}")
        for o in OCT: A(f"v_add_f32_dpp v{x+7}, v{x+7}, v{x+7} {o} {DPPM}")
        A("s_mov_b64 exec, s[98:99]")
        gstore(f"buffer_store_dwordx2 {vr(x+6,2)}, v{M}, {WS}, {sL} offen", True)
        A("s_mov_b64 exec, -1")
        A(f"v_cmp_u_f32 vcc, v{x+7}, v{x+7}")
        r = lab("mlr")
        retry("vccnz", r)
        cold.append(f"{r}:"); cold.append(f"ds_read_b32 v{x+5}, v{aMR} offset:{E + 64}"); cold.append(f"s_branch {l}")
        A(f"{sk}:")
        stamp(sb + 4)
        end6 = f"L_P6e_{tau}"
        A(f"s_cmp_eq_u32 s15, {tau}"); A(f"s_cbranch_scc0 {end6}")
        sk = lab("sk")
        A(f"s_cmp_eq_u32 {sPass}, 0"); A(f"s_cbranch_scc0 {sk}")
        if tau == 0: A(f"s_add_u32 s14, {sNW}, 82")
        else: A(f"s_lshl_b32 s14, {sNW}, 1"); A("s_add_u32 s14, s14, 164")
        wait_prog("s14", M)
        A(f"v_lshrrev_b32 v{t}, 4, v0"); A(f"v_bfe_u32 v{t+1}, v0, 2, 2"); A(f"v_lshl_add_u32 v{t+1}, v{t}, 3, v{t+1}")
        A(f"v_and_b32 v{t}, 1, v{t}")
        A(f"v_and_b32 v{t+2}, 3, v0"); A(f"v_lshlrev_b32 v{t+2}, 3, v{t+2}"); A(f"v_add_u32 v{t+2}, {L_WO}, v{t+2}")
        A("s_and_b32 s7, s6, 3")
        w64, wd = lab("w64"), lab("wd")
        A(f"s_cmp_eq_u32 {sNW}, 32"); A(f"s_cbranch_scc1 {w64}")
        A(f"v_xor_b32 v{t}, s7, v{t}"); A(f"v_lshl_add_u32 v{t+2}, v{t}, 5, v{t+2}"); A(f"v_lshl_add_u32 v{t+2}, v{t+1}, 6, v{t+2}")
        for s in range(8):
            for h in range(2): A(f"ds_read_b64_tr_b16 {vr(WO + 4*s + 2*h, 2)}, v{t+2} offset:{s*2048 + h*256}")
        A(f"s_branch {wd}")
        A(f"{w64}:")
        A(f"v_bfe_u32 v{t+3}, v0, 3, 1"); A(f"v_lshl_or_b32 v{t}, v{t}, 1, v{t+3}")
        A(f"v_xor_b32 v{t}, s7, v{t}"); A(f"v_lshl_add_u32 v{t+2}, v{t}, 5, v{t+2}"); A(f"v_lshl_add_u32 v{t+2}, v{t+1}, 7, v{t+2}")
        for s in range(8):
            for h in range(2): A(f"ds_read_b64_tr_b16 {vr(WO + 4*s + 2*h, 2)}, v{t+2} offset:{s*4096 + h*512}")
        A(f"{wd}:")
        A(f"{sk}:")
        stamp(sb + 5)
        A("s_waitcnt lgkmcnt(0)" + (" vmcnt(0)" if w6 else ""))
        A(f"L_P6_{tau}:")
        A(f"buffer_load_dwordx4 {vr(ML,4)}, v{aML}, {WS}, {sL} offen sc1")
        for s in range(8): A(f"buffer_load_dwordx4 {vr(t+4*s,4)}, v{aOL}, {WS}, {sL if s < 4 else 's96'} offen offset:{1024*(s%4)} sc1")
        A("s_waitcnt vmcnt(8)")
        m0, l0, m1, l1 = ML, ML + 1, ML + 2, ML + 3
        fl = []
        fl.append(f"v_max_f32_dpp v{M}, v{m0}, v{m0} {OCT[0]} {DPPM}"); fl.append(f"v_max_f32_dpp v{M+1}, v{m1}, v{m1} {OCT[0]} {DPPM}")
        for o in OCT[1:]:
            fl.append(f"v_max_f32_dpp v{M}, v{M}, v{M} {o} {DPPM}"); fl.append(f"v_max_f32_dpp v{M+1}, v{M+1}, v{M+1} {o} {DPPM}")
        fl.append(f"v_sub_f32 v{m0}, v{m0}, v{M}"); fl.append(f"v_sub_f32 v{m1}, v{m1}, v{M+1}")
        fl.append(f"v_exp_f32 v{m0}, v{m0}"); fl.append(f"v_exp_f32 v{m1}, v{m1}")
        fl.append(f"v_mul_f32 v{l0}, v{l0}, v{m0}"); fl.append(f"v_mul_f32 v{l1}, v{l1}, v{m1}")
        for o in OCT:
            fl.append(f"v_add_f32_dpp v{l0}, v{l0}, v{l0} {o} {DPPM}"); fl.append(f"v_add_f32_dpp v{l1}, v{l1}, v{l1} {o} {DPPM}")
        fl.append(f"v_rcp_f32 v{l0}, v{l0}"); fl.append(f"v_rcp_f32 v{l1}, v{l1}")
        fl.append(f"v_mul_f32 v{m0}, v{m0}, v{l0}"); fl.append(f"v_mul_f32 v{m1}, v{m1}, v{l1}")
        A(fl.pop(0)); A(fl.pop(0))
        for s in range(8):
            d = D + 4 * (s // 4)
            A(f"s_waitcnt vmcnt({7-s})")
            A(f"v_mfma_f32_16x16x32_bf16 {vr(d,4)}, {vr(t+4*s,4)}, {vr(WO+4*s,4)}, {0 if s % 4 == 0 else vr(d,4)}")
            A(fl.pop(0)); A(fl.pop(0))
        while fl: A(fl.pop(0))
        A(f"v_mul_f32_dpp v{M}, v{m0}, v{D} row_newbcast:0 {DPPM}")
        A(f"v_mul_f32_dpp v{M+1}, v{m0}, v{D+1} row_newbcast:1 {DPPM}")
        A(f"v_mul_f32_dpp v{M+2}, v{m0}, v{D+2} row_newbcast:2 {DPPM}")
        A(f"v_fmac_f32_dpp v{M}, v{m0}, v{D+3} row_newbcast:3 {DPPM}")
        A(f"v_fmac_f32_dpp v{M+1}, v{m1}, v{D+4} row_newbcast:0 {DPPM}")
        A(f"v_fmac_f32_dpp v{M+2}, v{m1}, v{D+5} row_newbcast:1 {DPPM}")
        A(f"v_fmac_f32_dpp v{M}, v{m1}, v{D+6} row_newbcast:2 {DPPM}")
        A(f"v_fmac_f32_dpp v{M+1}, v{m1}, v{D+7} row_newbcast:3 {DPPM}")
        A(f"v_add_f32 v{M}, v{M}, v{M+2}")
        A(f"v_add_f32 v{M+2}, v{M}, v{M+1}")
        A(f"v_add_f32 v{M}, v{M}, v{M+1}")
        A(f"v_permlane16_swap_b32 v{M}, v{M+2}")
        A(f"v_add_f32 v{M}, v{M}, v{M+2}")
        A(f"v_cmp_u_f32 vcc, v{M}, v{M}")
        retry("vccnz", f"L_P6_{tau}", sleep=sl6)
        A(f"buffer_store_dword v{M}, v{aAS}, {WS}, {sAPW} offen {asb}")
        stamp(sb + 6)
        if gate:
            if gate == 2: A("s_waitcnt vmcnt(0)")
            if gsl: A(f"s_sleep {gsl}")
            A(f"ds_write_b32 v{aMR}, v{aMR} offset:{E + 128}")
            A(f"s_branch L_P6f_{tau}")
        A(f"{end6}:")
        if gate:
            A(f"ds_read_b32 v{M}, v{aMR} offset:{E + 128}")
            A("s_waitcnt lgkmcnt(0)")
            A(f"v_cmp_eq_u32 vcc, -1, v{M}")
            retry("vccnz", end6, sleep=1)
            A(f"L_P6f_{tau}:")
        if tau == 0:
            sk = lab("sk")
            A(f"s_cmp_eq_u32 {sPass}, 0"); A(f"s_cbranch_scc0 {sk}")
            consumed(3, M + 2)
            A(f"{sk}:")
        next_layer()
    A(f"s_cmp_eq_u32 {sPass}, 0"); A("s_cbranch_scc0 L_final")
    A(f"s_mov_b32 {sPass}, 1")
    A(f"v_and_b32 v{M}, 15, v0"); A(f"v_mov_b32 v{M+1}, {OOBV}"); A(f"v_cmp_eq_u32 vcc, 1, v{M}"); A(f"v_cndmask_b32 v{aQS}, v{aQS}, v{M+1}, vcc")
    for a in (aXW, aX, aQW, aQR, aPW, aMW, aPR, aPR + 1, aPR + 2, aPR + 3, aMR):
        A(f"v_add_u32 v{a}, {2*EXL}, v{a}")
    if stamps:
        A("s_waitcnt lgkmcnt(0)")
        for i in range(16): A(f"v_writelane_b32 v{vST}, s{64+2*i}, {i}")
    A("s_branch L_P1_0")
    A("L_final:")
    A("s_cmp_lt_u32 s59, 8"); A("s_cbranch_scc0 L_fin_done")
    A("L_PF:")
    p1_loads(t)
    p1_core(t)
    A(f"v_cmp_u_f32 vcc, v{t}, v{t}")
    retry("vccnz", "L_PF")
    A(f"buffer_store_short v{t+1}, v{aOUT}, s[52:55], 0 offen")
    A("L_fin_done:")
    if stamps:
        stamp(1)
        A("s_waitcnt vmcnt(0)")
        stamp(0)
        A("s_waitcnt lgkmcnt(0)")
        for i in range(2, 16): A(f"v_writelane_b32 v{vST}, s{64+2*i}, {14 + i}")
        A(f"v_writelane_b32 v{vST}, s66, 30"); A(f"v_writelane_b32 v{vST}, s64, 31")
        A("L_stamps:")
        A("s_mov_b64 s[8:9], s[40:41]"); A("s_mov_b32 s10, 268435456"); A("s_mov_b32 s11, 0x20000")
        A("s_mul_i32 s7, s2, 9"); A("s_add_u32 s7, s7, s3"); A("s_lshl_b32 s7, s7, 8"); A(f"s_add_u32 s7, s7, {128 << 20}")
        A("v_lshlrev_b32 v1, 3, v0")
        A(f"v_mov_b32 v2, v{vST}"); A("v_mov_b32 v3, 0")
        A("s_mov_b32 exec_lo, -1"); A("s_mov_b32 exec_hi, 0")
        A("buffer_store_dwordx2 v[2:3], v1, s[8:11], s7 offen")
    A("L_end:")
    A("s_endpgm")
    L += cold
    body = finalize(L)
    out = [HDR.rstrip("\n"), f"; @launch grid=(256,1,1) block=(576,1,1) lds={LDS_TOTAL}",
           '.amdgcn_target "amdgcn-amd-amdhsa--gfx950"', ".text", f".globl {NAME}_kernel", ".p2align 8", f".type {NAME}_kernel,@function"]
    out += [(l if l.endswith(":") else "    " + l) for l in body]
    out += ['.section .rodata,"a"', ".p2align 6", f".amdhsa_kernel {NAME}_kernel", "  .amdhsa_next_free_vgpr 168", "  .amdhsa_next_free_sgpr 102",
            "  .amdhsa_accum_offset 168", "  .amdhsa_group_segment_fixed_size 0", "  .amdhsa_kernarg_size 104", "  .amdhsa_user_sgpr_count 2",
            "  .amdhsa_user_sgpr_kernarg_segment_ptr 1", "  .amdhsa_system_sgpr_workgroup_id_x 1", ".end_amdhsa_kernel"]
    return "\n".join(out) + "\n"

if __name__ == "__main__":
    ap = argparse.ArgumentParser()
    ap.add_argument("out"); ap.add_argument("--T", type=int, default=20); ap.add_argument("--nont", action="store_true")
    ap.add_argument("--stamps", action="store_true"); ap.add_argument("--nofast", action="store_true")
    ap.add_argument("--budget", type=int, default=400000); ap.add_argument("--cprio", type=int, default=0); ap.add_argument("--lprio", type=int, default=0)
    for k, d in (("gate", 2), ("w3", 0), ("w6", 0), ("sl1", 0), ("sl3", 0), ("sl6", 0), ("pre", 1), ("gsl", 0)): ap.add_argument("--" + k, type=int, default=d)
    ap.add_argument("--alb", default="sc1"); ap.add_argument("--asb", default="sc1")
    a = ap.parse_args()
    open(a.out, "w").write(gen(T=a.T, nt=not a.nont, stamps=a.stamps, fast=not a.nofast, cprio=a.cprio, lprio=a.lprio, budget=a.budget, gate=a.gate, w3=a.w3, w6=a.w6, sl1=a.sl1, sl3=a.sl3, sl6=a.sl6, pre=a.pre, alb=a.alb, asb=a.asb, gsl=a.gsl))
```

```python
import re
TRANS = ("v_exp_f32", "v_log_f32", "v_rcp_f32", "v_rsq_f32", "v_sqrt_f32", "v_sin_f32", "v_cos_f32")

def regs_of(op):
    op = op.strip()
    op = op.lstrip("-").strip("|")
    m = re.fullmatch(r"([vsa])\[(\d+):(\d+)\]", op)
    if m: return {(m.group(1), i) for i in range(int(m.group(2)), int(m.group(3)) + 1)}
    m = re.fullmatch(r"([vsa])(\d+)", op)
    if m: return {(m.group(1), int(m.group(2)))}
    if op == "vcc": return {("s", "vcc")}
    if op in ("vcc_lo", "vcc_hi"): return {("s", "vcc")}
    if op in ("exec", "exec_lo", "exec_hi"): return {("s", "exec")}
    if op == "m0": return {("s", "m0")}
    return set()

class Ins:
    def __init__(self, text):
        self.text = text
        t = text.split(";")[0].strip()
        self.label = t[:-1] if t.endswith(":") else None
        self.directive = t.startswith(".") or t == ""
        self.w = set(); self.r = set(); self.srcC = set(); self.ab = set()
        self.kind = None; self.dpp = False; self.states = 0; self.target = None; self.mn = ""
        if self.label or self.directive: return
        parts = t.split(None, 1)
        mn = parts[0]; self.mn = mn
        rest = parts[1] if len(parts) > 1 else ""
        ops = []; cur = ""; d = 0
        for ch in rest:
            if ch in "[(": d += 1
            if ch in "])": d -= 1
            if ch == "," and d == 0: ops.append(cur); cur = ""
            else: cur += ch
        ops.append(cur)
        last = ops[-1].strip().split(None, 1)
        mods = last[1] if len(last) > 1 else ""
        ops[-1] = last[0] if last else ""
        self.mods = mods
        R = [regs_of(o) for o in ops]
        self.states = 1
        if mn == "s_nop": self.states = int(ops[0]) + 1; self.kind = "salu"; return
        if mn.startswith("v_mfma"):
            self.kind = "mfma"; self.w = R[0]; self.ab = R[1] | R[2]; self.srcC = R[3]; self.r = self.ab | self.srcC
        elif mn.startswith("v_"):
            self.kind = "valu"
            self.dpp = mn.endswith("_dpp")
            if mn.startswith("v_permlane"):
                self.w = R[0] | R[1]; self.r = R[0] | R[1]
            else:
                self.w = R[0]; self.r = set().union(*R[1:]) if len(R) > 1 else set()
                if mn.startswith(("v_fmac", "v_mac", "v_writelane", "v_pk_fmac", "v_dot2c")) or self.dpp or "UNUSED_PRESERVE" in mods: self.r |= R[0]
                if mn.startswith("v_cndmask") and len(ops) == 3: self.r |= {("s", "vcc")}
        elif mn.startswith("buffer_load"):
            self.kind = "vmem"
            if " lds" in " " + mods: self.r = set().union(*R) | {("s", "m0")}; self.dma = True
            else: self.w = R[0]; self.r = set().union(*R[1:])
        elif mn.startswith(("buffer_store", "buffer_atomic")):
            self.kind = "vmem"; self.r = set().union(*R); self.sdata = R[0] if len(R[0]) >= 3 else set()
        elif mn.startswith("ds_read"):
            self.kind = "ds"; self.w = R[0]; self.r = set().union(*R[1:])
        elif mn.startswith("ds_"):
            self.kind = "ds"; self.r = set().union(*R)
        elif mn.startswith("s_"):
            self.kind = "salu"
            if mn.startswith(("s_cbranch", "s_branch")): self.target = ops[0].strip()
            elif mn.startswith(("s_cmp", "s_waitcnt", "s_barrier", "s_sleep", "s_setprio", "s_endpgm", "s_bitcmp")): self.r = set().union(*R)
            else: self.w = R[0]; self.r = set().union(*R[1:]) if len(R) > 1 else set()
        else:
            raise ValueError("unknown ins " + text)

def need(p, c):
    n = 0
    vw = {x for x in p.w if x[0] in "va"}
    sw = {x for x in p.w if x[0] == "s"}
    if p.kind == "valu":
        if c.kind == "valu" and (c.dpp or c.mn.startswith("v_permlane")) and vw & c.r: n = max(n, 2)
        if c.kind == "mfma" and vw & c.r: n = max(n, 2)
        if c.mn.startswith(("v_readfirstlane", "v_readlane")) and vw & c.r: n = max(n, 1)
        if p.mn.startswith(TRANS) and c.kind in ("valu",) and vw & c.r: n = max(n, 1)
        if p.mn.startswith(TRANS) and c.kind in ("vmem", "ds") and vw & c.r: n = max(n, 1)
        if "dst_sel:" in p.mods and c.kind == "valu" and vw & (c.r | c.w): n = max(n, 1)
        if p.mn.startswith("v_dot") and c.kind in ("valu", "mfma", "vmem", "ds") and vw & (c.r | c.w): n = max(n, 3)
        if ("s", "exec") in sw and c.kind == "mfma": n = max(n, 4)
        if sw:
            if c.kind == "valu" and sw & c.r: n = max(n, 4 if c.mn.startswith(("v_readlane", "v_writelane")) else 2)
            if c.kind == "vmem" and sw & c.r: n = max(n, 5)
    if p.kind == "mfma":
        if c.kind == "mfma":
            if p.w & c.ab: n = max(n, 8)
            if p.w & c.srcC and p.w != c.srcC: n = max(n, 6)
            if p.w & c.w and not (p.w == c.srcC): n = max(n, 6)
        elif c.kind in ("valu", "vmem", "ds"):
            if p.w & (c.r | c.w): n = max(n, 8)
            if c.kind == "valu" and p.srcC & c.w: n = max(n, 3)
    if p.kind == "vmem" and getattr(p, "sdata", None):
        if p.sdata & c.w: n = max(n, 2)
    if p.kind == "salu" and ("s", "m0") in p.w and getattr(c, "dma", False): n = max(n, 1)
    return n

def pad_needed(prev, c):
    dist = 0; req = 0
    for p in reversed(prev):
        if p.states == 0: continue
        k = need(p, c)
        if k - dist > req: req = k - dist
        dist += p.states
        if dist >= 8: break
    return req

def finalize(lines):
    ins = [Ins(l) for l in lines]
    out = []
    for c in ins:
        if c.states:
            prev = []
            for p in reversed(out):
                if p.mn in ("s_branch", "s_endpgm"): break
                prev.append(p)
                if len(prev) > 24: break
            prev.reverse()
            k = pad_needed(prev, c)
            if k > 0: out.append(Ins(f"s_nop {k-1}"))
        out.append(c)
    lab = {c.label: i for i, c in enumerate(out) if c.label}
    for i, c in enumerate(out):
        if c.target:
            prev = []
            for p in reversed(out[:i + 1]):
                if p is not c and p.mn in ("s_branch", "s_endpgm"): break
                prev.append(p)
                if len(prev) > 24: break
            prev.reverse()
            j = lab[c.target]; seq = list(prev); tot = 0; hops = 0
            while j < len(out) and tot < 8:
                d = out[j]
                if d.states:
                    if pad_needed(seq, d) > 0: raise ValueError(f"hazard across branch '{c.text}' at '{d.text}'")
                    seq.append(d); tot += d.states
                    if d.mn == "s_endpgm": break
                    if d.mn == "s_branch":
                        hops += 1
                        if hops > 4: break
                        j = lab[d.target]; continue
                j += 1
    return [c.text for c in out]
```

```python
import sys, argparse
from asmlib import finalize
NAME = "interleave_layers__sliding_block_cached__sliding_block_cached__decode"
HDR = open("cdna_kernels/" + NAME + ".s.ref").read().split("; Override launch")[0]

GRP0 = 4096
GL = 34048
GS = 4 * GL + 128
G_QP, G_CS, G_ST, G_OP, G_ML = 0, 16384, 24576, 25600, 33792
FLB = GRP0 + 16 * GS
APB = FLB + 256 * 128
CST = 73728 + 128
OOBV = 0x7FFF0000
L_WQ, L_K, L_V, L_WO, EX = 0, 36864, 69632, 102400, 135168
EXL = 2944
X_XI, X_QI, X_PI, X_MI = 0, 832, 2112, 2752
X_TR = X_PI + 256
L_PROG = EX + 4 * EXL
L_CONS = L_PROG + 64
L_GO = L_PROG + 128
LDS_TOTAL = EX + 12288
DPPM = "row_mask:0xf bank_mask:0xf"
OPTS = dict(T=20, T64=20, nont=0, stamps=0, nofast=0, budget=400000, cprio=0, lprio=0, gate=2, w3=1, w6=1, sl1=0, sl3=0, sl6=0,
            pre=1, preap=1, gsl=0, R=8, idle=0, sl3p=2, sl6p=2, sl1p=2, ldonly=0, nohelp=0, nox=0, warm=0, sp=0, spx=8, sps=0, spt=400, bthr=0, csl=0, asp=0, hsl=0)

def vr(b, n=1): return f"v{b}" if n == 1 else f"v[{b}:{b+n-1}]"

def gen(o):
    L = []
    A = L.append
    T, stamps, R = o.T, o.stamps, o.R
    APL = max(R, 2) * CST
    NT = "" if o.nont else " nt"
    KR = [8, 40]; VR = [24, 56]; WO = 72; TT = 104; ML = 136; D = 140; M = 148
    aL16, xold, aXW, aX, aWQ, aQS, vTag = 1, 2, 3, 4, 5, 6, 7
    aSTL, aQW, aQR, aPW, aMW, aPR, aMR, aOS, aCK, aML, aAS, aOUT, vST = 152, 153, 154, 155, 156, 157, 161, 162, 163, 164, 165, 166, 167
    WS = "s[8:11]"
    sL, sAPR, sQL, sCS, sPass, sBud, sAPW, sNW, sFast = "s60", "s61", "s62", "s63", "s42", "s43", "s56", "s57", "s58"
    sOL0, sOL1, sW = "s96", "s97", "s18"
    def stamp(i):
        if stamps: A(f"s_memrealtime s[{64+2*i}:{65+2*i}]")
    uid = [0]
    def lab(p):
        uid[0] += 1; return f"L_{p}_{uid[0]}"
    cold = []
    def retry(cond, target, sleep=0, sleep0=0):
        s = lab("rt")
        A(f"s_cbranch_{cond} {s}")
        cold.append(f"{s}:")
        if sleep: cold.append(f"s_sleep {sleep}")
        if sleep0:
            k = lab("rs")
            cold.append(f"s_cmp_eq_u32 {sPass}, 0"); cold.append(f"s_cbranch_scc0 {k}"); cold.append(f"s_sleep {sleep0}"); cold.append(f"{k}:")
        cold.append(f"s_sub_u32 {sBud}, {sBud}, 1")
        cold.append(f"s_cbranch_scc0 {target}")
        cold.append("s_endpgm")
    def wait_prog(thr_sgpr, tmp):
        l = lab("wp")
        A(f"v_mov_b32 v{tmp}, {L_PROG}")
        A(f"{l}:")
        A(f"ds_read_b32 v{tmp+1}, v{tmp}")
        A("s_waitcnt lgkmcnt(0)")
        A(f"v_cmp_gt_i32 vcc, {thr_sgpr}, v{tmp+1}")
        retry("vccnz", l, sleep=1)
    def consumed(stage, tmp):
        A(f"s_lshl_b32 s7, s6, 2")
        A(f"s_add_u32 s7, s7, {L_CONS}")
        A(f"v_mov_b32 v{tmp}, s7")
        A(f"v_mov_b32 v{tmp+1}, {stage}")
        A(f"ds_write_b32 v{tmp}, v{tmp+1}")
    def gstore(ins):
        if not o.nofast:
            a, b = lab("sl"), lab("sd")
            A(f"s_cbranch_scc1 {a}")
            A(ins)
            A(f"{b}:")
            cold.append(f"{a}:"); cold.append("s_nop 7"); cold.append(ins + " sc1"); cold.append(f"s_branch {b}")
        else:
            A(ins + " sc1")
    def fastcmp(): A(f"s_cmp_eq_u32 {sFast}, 0")
    def red8(t, mid=None):
        A(f"v_permlane32_swap_b32 v{t+2}, v{t+3}")
        if mid: mid()
        A(f"v_permlane32_swap_b32 v{t}, v{t+1}")
        A(f"v_add_f32 v{t+2}, v{t+2}, v{t+3}")
        A(f"v_add_f32 v{t}, v{t}, v{t+1}")
        A(f"v_permlane16_swap_b32 v{t}, v{t+2}")
        A(f"v_add_f32 v{t}, v{t}, v{t+2}")
        A(f"v_add_f32_dpp v{t}, v{t}, v{t} row_ror:8 {DPPM}")
    OCT = ["quad_perm:[1,0,3,2]", "quad_perm:[2,3,0,1]", "row_half_mirror"]
    def mkW():
        A(f"s_and_b32 s7, {sW}, 0x7f7f7f7f"); A("s_add_u32 s7, s7, 0x07050301")
        A(f"s_and_b32 {sW}, {sW}, 0x80808080"); A(f"s_xor_b32 {sW}, {sW}, s7")
        A(f"s_and_b32 s7, {sW}, 0xff"); A("s_cmp_eq_u32 s7, 0xff"); A("s_cselect_b32 s7, s7, 0"); A(f"s_xor_b32 {sW}, {sW}, s7")

    A(f"{NAME}_kernel:")
    stamp(0)
    A("s_cmp_ge_u32 s2, 256")
    A("s_cbranch_scc1 L_end")
    A("s_load_dwordx16 s[16:31], s[0:1], 0")
    A("s_load_dwordx8 s[32:39], s[0:1], 64")
    A("s_load_dwordx2 s[40:41], s[0:1], 96")
    A("v_lshrrev_b32 v1, 6, v0")
    A("v_and_b32 v0, 63, v0")
    A("v_readfirstlane_b32 s3, v1")
    A("s_and_b32 s4, s2, 7"); A("s_lshl_b32 s4, s4, 1"); A("s_lshr_b32 s5, s2, 7"); A("s_add_u32 s4, s4, s5")
    A("s_lshr_b32 s5, s2, 3"); A("s_and_b32 s5, s5, 15")
    A("s_cmp_ge_u32 s5, 14"); A(f"s_cselect_b32 {sNW}, 32, 16")
    A(f"s_mov_b32 {sBud}, {o.budget}")
    A("s_and_b32 s12, s5, 7")
    A("s_lshr_b32 s13, s5, 3")
    A("s_cmp_eq_u32 s3, 0")
    A("s_cbranch_scc0 L_compute")

    if stamps: A("s_memtime s[72:73]")
    if o.lprio: A(f"s_setprio {o.lprio}")
    A("v_lshrrev_b32 v1, 4, v0")
    A("v_and_b32 v2, 15, v0")
    A("v_lshlrev_b32 v3, 1, v1")
    A("v_xor_b32 v3, v3, v2")
    A("v_lshlrev_b32 v3, 4, v3")
    A("v_lshl_add_u32 v10, v1, 13, v3")
    A("v_xor_b32 v11, 0x80, v10")
    A("s_mul_i32 s60, s12, %d" % (72 * 8192))
    A("s_lshl_b32 s7, s4, 1"); A("s_add_u32 s7, s7, s13"); A("s_lshl_b32 s7, s7, 8"); A("s_add_u32 s60, s60, s7")
    A("s_mov_b32 s46, 4718592"); A("s_mov_b32 s47, 0x20000")
    A(f"v_mov_b32 v20, {L_PROG}")
    A("v_lshl_add_u32 v12, v1, 8, v3")
    A("v_xor_b32 v13, 0x80, v12")
    A("v_xor_b32 v3, v1, v2")
    A("v_lshlrev_b32 v3, 4, v3")
    A("v_lshl_add_u32 v14, v1, 8, v3")
    A("v_xor_b32 v15, 0x40, v14"); A("v_xor_b32 v16, 0x80, v14"); A("v_xor_b32 v17, 0xc0, v14")
    A("s_lshl_b32 s61, s13, 24"); A("s_lshl_b32 s7, s4, 20"); A("s_add_u32 s61, s61, s7")
    A("s_lshl_b32 s7, s12, 15"); A("s_add_u32 s61, s61, s7"); A("s_add_u32 s61, s61, %d" % (3072 * 256))
    A("s_mul_i32 s62, s4, %d" % (256 * 1152))
    A("s_lshl_b32 s7, s5, 6"); A("s_cmp_eq_u32 s5, 15"); A("s_cselect_b32 s7, 1024, s7"); A("s_add_u32 s62, s62, s7")
    A("v_lshrrev_b32 v4, 2, v0"); A("v_and_b32 v5, 3, v0"); A("v_lshrrev_b32 v6, 5, v0"); A("v_lshlrev_b32 v6, 1, v6")
    A("v_xor_b32 v5, v5, v6"); A("v_lshlrev_b32 v5, 4, v5"); A("v_mul_u32_u24 v4, 1152, v4"); A("v_add_u32 v18, v4, v5")
    A("v_mov_b32 v19, v18")
    A("s_mov_b32 s63, %d" % (16 * 1152))
    A("s_cmp_ge_u32 s5, 14")
    A("s_cbranch_scc0 L_ld_wo_done")
    A("v_lshrrev_b32 v4, 3, v0"); A("v_and_b32 v5, 7, v0"); A("v_and_b32 v6, 1, v1"); A("v_lshlrev_b32 v6, 1, v6")
    A("v_xor_b32 v5, v5, v6"); A("v_lshlrev_b32 v5, 4, v5"); A("v_mul_u32_u24 v4, 1152, v4"); A("v_add_u32 v18, v4, v5")
    A("v_xor_b32 v5, 0x40, v5"); A("v_add_u32 v19, v4, v5")
    A("s_mov_b32 s63, %d" % (8 * 1152))
    A("L_ld_wo_done:")
    for b in (50, 54): A(f"s_mov_b32 s{b}, 33554432"); A(f"s_mov_b32 s{b+1}, 0x20000")
    A("s_mov_b32 s58, 4718592"); A("s_mov_b32 s59, 0x20000")
    A(f"s_lshr_b32 s15, {sNW}, 2")
    A("v_and_b32 v22, 7, v0"); A("v_lshlrev_b32 v22, 2, v22"); A(f"v_add_u32 v22, {L_CONS}, v22")
    A("s_mov_b32 s42, 0")
    A("s_waitcnt lgkmcnt(0)")
    A("s_mov_b64 s[44:45], s[22:23]"); A("s_mov_b64 s[48:49], s[18:19]"); A("s_mov_b64 s[52:53], s[20:21]"); A("s_mov_b64 s[56:57], s[24:25]")
    A(f"s_mov_b32 s14, {L_WQ}")
    def warm():
        A("s_add_u32 s6, s62, %d" % (255 * 1152)); A("s_add_u32 s7, s60, %d" % (71 * 8192))
        for b, off in ((18, "s61"), (20, "s61"), (24, "s62"), (24, "s6"), (32, "s60"), (32, "s7"), (28, "s61"), (30, "s61"), (34, "s62"), (34, "s6")):
            A(f"s_load_dword s98, s[{b}:{b+1}], {off}")
        for off in range(0, APB + 4 * APL, 1 << 21):
            A(f"s_mov_b32 s6, {off}"); A(f"s_load_dword s98, s[40:41], s6")
        A("s_load_dword s98, s[36:37], 0")
    if o.warm == 2: warm()
    def loader(T, sfx):
        def ld(v, srd, step):
            A(f"s_waitcnt vmcnt({T-1})")
            A(f"buffer_load_dwordx4 v{v}, s[{srd}:{srd+3}], s96 offen{NT} lds")
            A("ds_write_b32 v20, v21")
            A(f"s_add_u32 s96, s96, {step}")
            A("s_add_u32 m0, m0, 1024")
            A("v_add_u32 v21, 1, v21")
        def seg(vs, srd, step, base, ldsb, iters):
            l = lab("seg")
            A(f"s_mov_b32 s96, {base}"); A(f"s_mov_b32 m0, {ldsb}"); A(f"s_mov_b32 s97, {iters}")
            A(f"{l}:")
            for v in vs: ld(v, srd, step)
            A("s_sub_u32 s97, s97, 1"); A("s_cmp_lg_u32 s97, 0"); A(f"s_cbranch_scc1 {l}")
        def wait_cons(stage):
            l, e = lab("wc"), lab("wce")
            if o.ldonly: return
            A("s_cmp_eq_u32 s42, 0"); A(f"s_cbranch_scc1 {e}")
            A(f"{l}:")
            A("ds_read_b32 v23, v22"); A("s_waitcnt lgkmcnt(0)")
            A(f"v_cmp_gt_i32 vcc, {stage}, v23")
            retry("vccnz", l, sleep=1)
            A(f"{e}:")
        A(f"v_mov_b32 v21, {1 - T}")
        A(f"L_ld_loop{sfx}:")
        seg([10, 10, 11, 11], 44, 32768, "s60", "s14", 4)
        ld(11, 44, 32768); ld(11, 44, 32768)
        A("s_cmp_eq_u32 s42, 0"); A(f"s_cbranch_scc0 L_ld_nobar{sfx}")
        if o.warm == 1: warm()
        A("s_barrier"); A(f"L_ld_nobar{sfx}:")
        stamp(6)
        wait_cons(1)
        stamp(7)
        seg([14, 15, 16, 17], 48, 1024, "s61", L_K, 8)
        stamp(8)
        wait_cons(2)
        stamp(9)
        seg([12, 12, 13, 13], 52, 1024, "s61", L_V, 8)
        stamp(10)
        wait_cons(3)
        stamp(11)
        seg([18, 19, 18, 19], 56, "s63", "s62", L_WO, "s15")
        A("s_cmp_eq_u32 s42, 0"); A(f"s_cbranch_scc0 L_ld_drain{sfx}")
        stamp(1)
        if stamps:
            A("s_waitcnt lgkmcnt(0)")
            for i, k in ((6, 12), (8, 13), (10, 14)): A(f"s_mov_b32 s{64+2*k}, s{64+2*i}")
        A("s_mov_b32 s42, 1")
        A("s_mov_b64 s[44:45], s[32:33]"); A("s_mov_b64 s[48:49], s[28:29]"); A("s_mov_b64 s[52:53], s[30:31]"); A("s_mov_b64 s[56:57], s[34:35]")
        A(f"s_mov_b32 s14, {L_WQ + 18432}")
        A(f"s_branch L_ld_loop{sfx}")
        A(f"L_ld_drain{sfx}:")
        stamp(2)
        for k in range(T - 1, -1, -1):
            A(f"s_waitcnt vmcnt({k})"); A("ds_write_b32 v20, v21"); A("v_add_u32 v21, 1, v21")
        stamp(3)
        if stamps:
            A("s_memtime s[74:75]")
            A("s_waitcnt lgkmcnt(0)")
            A("s_sub_u32 s72, s74, s72"); A("s_add_u32 s72, s72, s64")
            A(f"v_mov_b32 v{vST}, 0")
            for i in range(15): A(f"v_writelane_b32 v{vST}, s{64+2*i}, {i}")
            A("s_branch L_stamps")
        A("s_waitcnt lgkmcnt(0)")
        A("s_endpgm")
    if o.T64 != T:
        A("s_cmp_ge_u32 s5, 14"); A("s_cbranch_scc1 L_ld64")
        loader(T, "a")
        A("L_ld64:")
        loader(o.T64, "b")
    else:
        loader(T, "a")

    A("L_helper:")
    if o.nohelp == 1: A("s_barrier"); A("s_endpgm")
    for i in range(4): A(f"v_mov_b32 v{8+i}, -1")
    A("v_lshlrev_b32 v1, 4, v0")
    A(f"s_mul_i32 s6, s4, {GS}"); A(f"s_add_u32 s6, s6, {GRP0}")
    A("s_lshl_b32 s15, s5, 9"); A("s_add_u32 s15, s15, s6"); A(f"s_add_u32 s15, s15, {G_OP}")
    A("s_lshl_b32 s7, s5, 7"); A("s_lshl_b32 s14, s5, 9"); A("s_sub_u32 s7, s7, s14"); A(f"s_add_u32 s7, s7, {G_ML - G_OP - 512}")
    A("v_add_u32 v2, s7, v1"); A("v_cmp_gt_u32 vcc, 32, v0"); A("v_cndmask_b32 v2, v2, v1, vcc")
    A("s_cmp_lt_u32 s5, 2"); A("s_cselect_b32 s44, 0xff, 0")
    A("s_lshl_b32 s7, s4, 4"); A("s_add_u32 s59, s7, s5")
    A("v_lshrrev_b32 v3, 3, v0"); A("v_and_b32 v4, 7, v0"); A("v_lshlrev_b32 v4, 4, v4"); A("v_lshl_add_u32 v3, v3, 11, v4")
    A("s_lshr_b32 s7, s5, 1"); A(f"s_mul_i32 s46, s7, {CST}"); A("s_and_b32 s7, s5, 1"); A(f"s_mul_i32 s7, s7, {18*2048}"); A("s_add_u32 s46, s46, s7")
    A("s_lshl_b32 s7, s4, 7"); A("s_add_u32 s46, s46, s7"); A(f"s_add_u32 s46, s46, {APB}")
    def apinit():
        A(f"buffer_store_dwordx4 v[8:11], v3, {WS}, s46 offen sc1")
        A("s_add_u32 s7, s46, 16384")
        A(f"buffer_store_dwordx4 v[8:11], v3, {WS}, s7 offen sc1")
        A("s_add_u32 s7, s46, 32768"); A("s_mov_b64 exec, 0xffff")
        A(f"buffer_store_dwordx4 v[8:11], v3, {WS}, s7 offen sc1")
        A("s_mov_b64 exec, -1")
        A(f"s_add_u32 s46, s46, {APL}")
    A("s_waitcnt lgkmcnt(0)")
    A(f"s_load_dword {sW}, s[40:41], 0")
    A("s_mov_b64 s[8:9], s[40:41]"); A("s_mov_b32 s10, 268435456"); A("s_mov_b32 s11, 0x20000")
    A("s_mov_b32 exec_hi, s44")
    A(f"buffer_store_dwordx4 v[8:11], v2, {WS}, s15 offen sc1")
    A("s_mov_b64 exec, -1")
    if o.preap:
        assert R == 8
        apinit()
    A("s_barrier")
    if o.nohelp == 2: A("s_endpgm")
    A("s_getreg_b32 s19, hwreg(HW_REG_XCC_ID, 0, 4)")
    A("s_mul_i32 s7, s5, 50"); A("s_min_u32 s7, s7, 748"); A("s_lshl_b32 s7, s7, 7"); A("s_add_u32 s47, s7, s6"); A(f"s_add_u32 s47, s47, {GL}")
    A("s_add_u32 s14, s47, 4096")
    A("v_lshlrev_b32 v6, 7, v0")
    A("s_waitcnt lgkmcnt(0)")
    mkW()
    A(f"s_xor_b32 {sW}, {sW}, s19"); A(f"s_mov_b32 s19, {sW}")
    for i in range(4): A(f"v_mov_b32 v{12+i}, {sW}")
    A("s_lshl_b32 s45, s59, 7"); A(f"s_add_u32 s45, s45, {FLB}")
    A("s_waitcnt vmcnt(0)")
    stamp(1)
    A("s_mov_b64 exec, 0xff")
    A(f"buffer_store_dwordx4 v[12:15], v1, {WS}, s45 offen sc1")
    if o.pre:
        A("s_mov_b32 exec_lo, 0x01010101"); A("s_and_b32 exec_hi, s44, 1")
        A(f"buffer_load_dword v5, v2, {WS}, s15 offen sc1")
    A("s_mov_b64 exec, -1")
    for i in range(4): A(f"buffer_store_dwordx4 v[8:11], v1, {WS}, s47 offen offset:{1024*i} sc1")
    for i in range(2): A(f"buffer_store_dwordx4 v[8:11], v1, {WS}, s14 offen offset:{1024*i} sc1")
    A("s_mov_b64 exec, 0xffff")
    A(f"buffer_store_dwordx4 v[8:11], v1, {WS}, s14 offen offset:2048 sc1")
    A("s_mov_b64 exec, -1")
    if o.preap:
        apinit(); apinit()
        A("s_cmp_lt_u32 s5, 4"); A("s_cbranch_scc0 L_h_noap3")
        apinit()
        A("L_h_noap3:")
    if o.nohelp == 3: A("s_endpgm")
    A("s_lshl_b32 s7, s4, 11"); A(f"s_add_u32 s7, s7, {FLB}")
    A(f"s_add_u32 s48, s40, s7"); A("s_addc_u32 s49, s41, 0")
    A("s_waitcnt vmcnt(0)")
    if o.pre:
        A("s_mov_b32 exec_hi, 0x3ffff")
        A(f"buffer_load_dword v5, v6, {WS}, s47 offen sc1")
        A("s_mov_b64 exec, -1")
    stamp(3)
    if o.hsl: A(f"s_sleep {o.hsl}")
    A("L_gc0:")
    for i in range(16): A(f"s_load_dword s{20+i}, s[48:49], {i*128} glc")
    A("s_waitcnt lgkmcnt(0)")
    for i in range(8): A(f"s_xor_b64 s[{20+2*i}:{21+2*i}], s[{20+2*i}:{21+2*i}], s[18:19]")
    for i in range(1, 8): A(f"s_or_b64 s[20:21], s[20:21], s[{20+2*i}:{21+2*i}]")
    A("s_or_b32 s20, s20, s21")
    A("s_cmp_gt_u32 s20, 15")
    retry("scc1", "L_gc0", sleep=4)
    A("s_cmp_eq_u32 s20, 0"); A("s_cselect_b32 s7, 1, 0")
    A(f"v_mov_b32 v1, {L_GO}"); A(f"v_mov_b32 v2, s7")
    A(f"ds_write_b32 v1, v2")
    stamp(2)
    A("s_waitcnt lgkmcnt(0)")
    if stamps:
        A(f"v_mov_b32 v{vST}, 0")
        for i in range(4): A(f"v_writelane_b32 v{vST}, s{64+2*i}, {i}")
        A("s_branch L_stamps")
    A("s_endpgm")

    A("L_compute:")
    if o.sp:
        A("s_barrier")
        A("s_cmp_eq_u32 s3, 9"); A("s_cbranch_scc0 L_end")
        A("s_waitcnt lgkmcnt(0)")
        A(f"s_load_dword {sW}, s[40:41], 0")
        A("s_mov_b64 s[8:9], s[40:41]"); A("s_mov_b32 s10, 268435456"); A("s_mov_b32 s11, 0x20000")
        A(f"s_lshl_b32 s44, s2, 7"); A(f"s_add_u32 s44, s44, {FLB}")
        A(f"s_xor_b32 s45, s2, {o.spx}"); A(f"s_lshl_b32 s45, s45, 7"); A(f"s_add_u32 s45, s45, {FLB}")
        A("v_mov_b32 v1, 0")
        A("s_waitcnt lgkmcnt(0)")
        mkW()
        A(f"v_mov_b32 v2, {sW}")
        def poll():
            if o.sp == 1: A("s_load_dword s20, s[40:41], s45 glc"); A("s_waitcnt lgkmcnt(0)")
            if o.sp == 2: A("s_load_dword s20, s[40:41], s45"); A("s_waitcnt lgkmcnt(0)")
            if o.sp == 3: A(f"buffer_load_dword v3, v1, {WS}, s45 offen sc1"); A("s_waitcnt vmcnt(0)"); A("v_readfirstlane_b32 s20, v3")
            if o.sp >= 5: A(f"buffer_load_dword v3, v1, {WS}, s45 offen " + {5: "sc0 sc1", 6: "sc1 nt", 7: "sc0 sc1 nt", 8: "nt"}[o.sp]); A("s_waitcnt vmcnt(0)"); A("v_readfirstlane_b32 s20, v3")
            if o.sp == 4: A("s_load_dwordx16 s[20:35], s[40:41], s45 glc"); A("s_waitcnt lgkmcnt(0)")
        poll()
        A("L_sp0:")
        A("s_memrealtime s[66:67]"); A("s_waitcnt lgkmcnt(0)")
        A("s_sub_u32 s7, s66, s64"); A(f"s_cmp_lt_u32 s7, {o.spt}"); A("s_cbranch_scc1 L_sp0")
        A("s_mov_b64 exec, 1")
        A(f"buffer_store_dword v2, v1, {WS}, s44 offen" + {0: "", 1: " sc1", 2: " sc0 sc1", 3: " sc1 nt", 4: " sc0 sc1 nt"}[o.sps])
        A("s_mov_b32 s46, 0")
        A("L_sp1:")
        poll()
        A("s_add_u32 s46, s46, 1")
        A(f"s_cmp_eq_u32 s20, {sW}"); A("s_cbranch_scc1 L_sp2")
        A("s_cmp_lt_u32 s46, 100"); A("s_cbranch_scc1 L_sp1")
        A("L_sp2:")
        A("s_memrealtime s[68:69]")
        A("s_waitcnt vmcnt(0)")
        A("s_memrealtime s[72:73]")
        A("s_mov_b64 exec, -1")
        A("s_waitcnt lgkmcnt(0)")
        A("s_add_u32 s70, s64, s46")
        A(f"v_mov_b32 v{vST}, 0")
        for i in range(5): A(f"v_writelane_b32 v{vST}, s{64+2*i}, {i}")
        A("s_branch L_stamps")
    if o.ldonly == 1: A("s_barrier"); A("s_endpgm")
    A("s_cmp_eq_u32 s3, 9"); A("s_cbranch_scc1 L_helper")
    if o.cprio: A(f"s_setprio {o.cprio}")
    t = TT
    A("s_sub_u32 s6, s3, 1")
    for i in range(4): A(f"v_mov_b32 v{D+i}, -1")
    A(f"v_lshlrev_b32 v{aL16}, 4, v0")
    A("s_lshl_b32 s7, s6, 10"); A(f"s_add_u32 s7, s7, {EX}")
    A(f"v_add_u32 v{t+1}, s7, v{aL16}")
    A(f"ds_write_b128 v{t+1}, {vr(D,4)}")
    A("s_cmp_lt_u32 s6, 4"); A("s_cbranch_scc0 L_fill2")
    A(f"ds_write_b128 v{t+1}, {vr(D,4)} offset:8192")
    A("L_fill2:")
    n_, G_, q4, idx, oob = t+2, t+3, t+4, t+6, t+10
    A(f"v_and_b32 v{n_}, 15, v0"); A(f"v_lshrrev_b32 v{G_}, 4, v0"); A(f"v_and_b32 v{q4}, 7, v0")
    A(f"v_and_b32 v{idx}, 1, v{G_}"); A(f"v_lshlrev_b32 v{idx}, 1, v{idx}"); A(f"v_lshrrev_b32 v{t+7}, 5, v0"); A(f"v_add_u32 v{idx}, v{idx}, v{t+7}")
    A("s_lshl_b32 s7, s4, 4"); A("s_add_u32 s59, s7, s5")
    A(f"s_mul_i32 {sL}, s4, {GS}"); A(f"s_add_u32 {sL}, {sL}, {GRP0}")
    A("s_and_b32 s98, s6, 3")
    A("s_mul_i32 s99, s12, 9"); A("s_lshr_b32 s99, s99, 1"); A("s_add_u32 s99, s99, s6")
    A(f"v_and_b32 v{t+7}, 3, v0"); A(f"v_lshl_add_u32 v{t+7}, v{t+7}, 2, v{idx}")
    A("s_lshl_b32 s7, s99, 4"); A(f"v_add_u32 v{t+7}, s7, v{t+7}")
    A("s_mul_i32 s7, s12, 72"); A(f"v_subrev_u32 v{t+8}, s7, v{t+7}")
    A(f"v_mov_b32 v{t+9}, 72"); A(f"v_cmp_lt_u32 s[14:15], v{t+8}, v{t+9}")
    A(f"v_bfe_u32 v{t+5}, v0, 2, 1")
    A(f"v_mul_u32_u24 v{t+9}, 576, v{t+5}"); A(f"v_add_lshl_u32 v{t+9}, v{t+9}, v{t+7}, 1")
    A(f"v_mov_b32 v{oob}, {OOBV}")
    A(f"v_cndmask_b32 v{aOUT}, v{oob}, v{t+9}, s[14:15]")
    A("s_waitcnt lgkmcnt(0)")
    A("s_mov_b64 s[44:45], s[16:17]"); A("s_mov_b32 s46, 2304"); A("s_mov_b32 s47, 0x20000")
    A(f"s_load_dword {sW}, s[40:41], 0")
    if not o.nox: A(f"buffer_load_ushort v{xold}, v{aOUT}, s[44:47], 0 offen")
    A("s_barrier")
    A("s_mov_b64 s[8:9], s[40:41]"); A("s_mov_b32 s10, 268435456"); A("s_mov_b32 s11, 0x20000")
    A("s_mov_b64 s[52:53], s[36:37]"); A("s_mov_b32 s54, 2304"); A("s_mov_b32 s55, 0x20000")
    A("s_cmp_lt_u32 s6, 4"); A("s_cbranch_scc0 L_const_done")
    A(f"s_mul_i32 s7, s6, {EXL}"); A(f"s_add_u32 s7, s7, {EX + X_XI}")
    A(f"v_add_u32 v{t+11}, s7, v{aL16}")
    A(f"v_mov_b32 v{t+12}, 0")
    ones = set(range(40, 48)) | {51}
    wr = set(range(52)) - set(range(8)) - {11} - set(range(20, 28)) - {31}
    msk = lambda S: sum(1 << i for i in S)
    A("s_mov_b32 exec_lo, 0"); A(f"s_mov_b32 exec_hi, {hex(msk(ones) >> 32)}")
    A(f"v_mov_b32 v{t+12}, 0x3f803f80")
    A(f"s_mov_b32 exec_lo, {hex(msk(wr) & 0xffffffff)}"); A(f"s_mov_b32 exec_hi, {hex(msk(wr) >> 32)}")
    for i in range(1, 4): A(f"v_mov_b32 v{t+12+i}, v{t+12}")
    A(f"ds_write_b128 v{t+11}, {vr(t+12,4)}")
    A("s_mov_b64 exec, -1")
    A("L_const_done:")
    u = t + 16
    A(f"s_lshr_b32 s7, s4, {1 + {8: 0, 4: 1, 2: 2, 1: 3}[R]}"); A(f"s_mul_i32 s7, s7, {CST}")
    A(f"s_lshl_b32 {sAPR}, s99, 11"); A(f"s_add_u32 {sAPR}, {sAPR}, s7"); A(f"s_add_u32 {sAPR}, {sAPR}, {APB - APL}")
    A(f"s_mov_b32 {sAPW}, {APB}")
    A(f"v_add_u32 v{u}, 24, v{t+8}"); A(f"v_cmp_gt_u32 vcc, 64, v{t+8}"); A(f"v_cndmask_b32 v{u}, v{u}, v{t+8}, vcc")
    A(f"v_mul_u32_u24 v{u+1}, 320, v{t+5}"); A(f"v_lshl_add_u32 v{u}, v{u}, 1, v{u+1}"); A(f"v_add_u32 v{u}, {EX + X_XI}, v{u}")
    A(f"v_mov_b32 v{u+1}, {EX + X_TR}")
    A(f"v_cndmask_b32 v{aXW}, v{u+1}, v{u}, s[14:15]")
    n4, n3 = u + 4, u + 5
    A(f"v_lshrrev_b32 v{n4}, 2, v{n_}"); A(f"v_and_b32 v{n3}, 3, v{n_}")
    G1, G2 = u + 6, u + 7
    A(f"v_and_b32 v{G1}, 1, v{G_}"); A(f"v_lshrrev_b32 v{G2}, 1, v{G_}")
    A(f"v_and_b32 v{u}, 1, v{n4}"); A(f"v_mul_u32_u24 v{u+1}, 320, v{u}"); A(f"v_mov_b32 v{u+2}, 640")
    A(f"v_cmp_eq_u32 vcc, 0, v{n3}"); A(f"v_cndmask_b32 v{u+2}, v{u+2}, v{u+1}, vcc")
    A(f"v_lshl_add_u32 v{u+2}, v{G_}, 4, v{u+2}"); A(f"v_add_u32 v{aX}, {EX + X_XI}, v{u+2}")
    A(f"v_add_u32 v{u+2}, 640, v{u+1}")
    A(f"v_cmp_eq_u32 vcc, 1, v{n3}"); A(f"v_cndmask_b32 v{u+1}, v{u+1}, v{u+2}, vcc")
    A(f"v_lshl_add_u32 v{u+1}, v{G_}, 4, v{u+1}"); A(f"v_add_u32 v{aQR}, {EX + X_QI}, v{u+1}")
    A(f"v_and_b32 v{u}, 31, v0"); A(f"v_mul_u32_u24 v{u+1}, 320, v{G2}"); A(f"v_lshl_add_u32 v{u}, v{u}, 3, v{u+1}"); A(f"v_add_u32 v{aCK}, {EX}, v{u}")
    A(f"v_lshl_add_u32 v{u}, v{G_}, 3, v{n4}"); A(f"v_lshlrev_b32 v{u}, 8, v{u}")
    A(f"v_lshl_or_b32 v{u+1}, v{G1}, 2, v{n4}"); A(f"v_xor_b32 v{u+1}, s6, v{u+1}")
    A(f"v_lshl_add_u32 v{u}, v{u+1}, 5, v{u}"); A(f"v_lshl_add_u32 v{aWQ}, v{n3}, 3, v{u}")
    A("s_lshl_b32 s7, s13, 12"); A("s_lshr_b32 s101, s6, 1"); A("s_lshl_b32 s101, s101, 10"); A("s_add_u32 s7, s7, s101")
    A("s_lshl_b32 s101, s12, 7"); A("s_add_u32 s7, s7, s101"); A("s_and_b32 s101, s6, 1"); A("s_lshl_b32 s101, s101, 6"); A("s_add_u32 s7, s7, s101")
    A(f"v_lshl_add_u32 v{u}, v{G_}, 4, s7")
    A(f"v_mov_b32 v{aQS}, v{oob}")
    A(f"v_cmp_eq_u32 vcc, 0, v{n_}"); A(f"v_cndmask_b32 v{aQS}, v{aQS}, v{u}, vcc")
    A(f"v_add_u32 v{u}, 8192, v{u}"); A(f"v_cmp_eq_u32 vcc, 4, v{n_}"); A(f"v_cndmask_b32 v{aQS}, v{aQS}, v{u}, vcc")
    A(f"v_add_u32 v{u}, 8192, v{u}"); A(f"v_cmp_eq_u32 vcc, 1, v{n_}"); A(f"v_cndmask_b32 v{aQS}, v{aQS}, v{u}, vcc")
    A(f"s_lshl_b32 s7, s6, 10"); A(f"s_add_u32 {sCS}, {sL}, s7"); A("s_lshl_b32 s7, s13, 13"); A(f"s_add_u32 {sQL}, {sCS}, s7"); A(f"s_add_u32 {sCS}, {sCS}, {G_CS}")
    A("s_lshl_b32 s7, s13, 9"); A(f"s_add_u32 s7, s7, {G_ST}")
    A(f"v_lshl_add_u32 v{aSTL}, v{q4}, 6, s7")
    A("s_lshr_b32 s100, s6, 2")
    A("s_mul_i32 s7, s100, 320"); A("s_lshl_b32 s101, s98, 6"); A("s_add_u32 s7, s7, s101"); A(f"s_add_u32 s7, s7, {EX + X_QI}")
    A(f"v_lshl_add_u32 v{u}, v{q4}, 2, v{idx}"); A(f"v_lshl_add_u32 v{aQW}, v{u}, 1, s7")
    A("s_lshl_b32 s7, s6, 5"); A(f"s_add_u32 s7, s7, {EX + X_PI}")
    A(f"v_mul_u32_u24 v{u}, 320, v{G1}"); A(f"v_lshl_add_u32 v{u}, v{n_}, 1, v{u}"); A(f"v_add_u32 v{aPW}, s7, v{u}")
    A("s_lshl_b32 s7, s6, 2"); A(f"s_add_u32 s7, s7, {EX + X_MI}")
    A(f"v_lshl_add_u32 v{aMW}, v{G1}, 5, s7")
    A(f"v_lshrrev_b32 v{u}, 3, v{n_}"); A(f"v_mul_u32_u24 v{u}, 320, v{u}"); A(f"v_lshl_add_u32 v{u}, v{q4}, 5, v{u}")
    A(f"v_lshl_add_u32 v{u}, v{G1}, 4, v{u}"); A(f"v_add_u32 v{u}, {EX + X_PI}, v{u}")
    A(f"v_mov_b32 v{u+1}, {EX + X_XI + 128}")
    A(f"v_xor_b32 v{u+2}, v{q4}, v{G2}")
    for s in range(4):
        A(f"v_cmp_eq_u32 vcc, {2*s}, v{u+2}"); A(f"v_cndmask_b32 v{aPR+s}, v{u+1}, v{u}, vcc")
    A(f"v_lshl_add_u32 v{u}, v{G1}, 2, v{n_}"); A(f"v_and_b32 v{u}, 7, v{u}"); A(f"v_lshl_add_u32 v{u}, v{G2}, 3, v{u}")
    A(f"v_lshlrev_b32 v{u+1}, 2, v{u}"); A(f"v_add_u32 v{aMR}, {EX + X_MI}, v{u+1}")
    A(f"v_lshlrev_b32 v{u}, 4, v{u}"); A(f"v_add_u32 v{aML}, {G_ML}, v{u}")
    A(f"v_cmp_eq_u32 s[14:15], 0, v{G1}")
    A("s_lshl_b32 s7, s6, 9"); A("s_lshl_b32 s101, s5, 4"); A("s_add_u32 s7, s7, s101"); A(f"s_add_u32 s7, s7, {G_OP}")
    A(f"v_lshlrev_b32 v{u}, 12, v{G2}"); A(f"v_lshrrev_b32 v{u+1}, 3, v{n_}"); A(f"v_lshl_add_u32 v{u}, v{u+1}, 8, v{u}")
    A(f"v_lshl_add_u32 v{u}, v{q4}, 1, v{u}"); A(f"v_add_u32 v{u}, s7, v{u}")
    A(f"v_cndmask_b32 v{aOS}, v{oob}, v{u}, s[14:15]")
    A("s_lshl_b32 s7, s5, 1"); A("s_cmp_eq_u32 s5, 15"); A("s_cselect_b32 s7, 32, s7"); A("s_add_u32 s7, s7, s98")
    A("s_lshl_b32 s7, s7, 4"); A("s_add_u32 s7, s7, s4"); A("s_lshl_b32 s7, s7, 7")
    A(f"v_lshlrev_b32 v{u}, 2, v{n_}"); A(f"v_lshl_add_u32 v{u}, v{G2}, 6, v{u}"); A(f"v_add_u32 v{u}, s7, v{u}")
    if R == 1: A(f"v_mov_b32 v{u+1}, v{oob}")
    else: A(f"v_add_u32 v{u+1}, {CST}, v{u}")
    A(f"v_cndmask_b32 v{aAS}, v{u+1}, v{u}, s[14:15]")
    A(f"s_mov_b32 {sPass}, 0"); A(f"s_mov_b32 {sFast}, 0")
    A(f"s_add_u32 {sOL0}, {sL}, {G_OP}"); A(f"s_add_u32 {sOL1}, {sL}, {G_OP + 4096}")
    A(f"s_lshr_b32 s7, {sNW}, 3"); A("s_cmp_lt_u32 s98, s7"); A("s_cselect_b32 s15, s100, 2")
    A("s_mov_b32 s98, 1"); A("s_mov_b32 s99, 1")
    A("s_mov_b32 s100, 0x3ae38e39")
    A("s_mov_b32 s101, 0x3e0293ee")
    if stamps: A(f"v_mov_b32 v{vST}, 0")
    A(f"v_mov_b32 v{u+1}, 12"); A(f"v_cmp_eq_u32 vcc, 0, v{n3}"); A(f"v_cndmask_b32 v{u+1}, v{u+1}, v{n4}, vcc")
    A(f"v_lshl_or_b32 v{u}, v{G_}, 8, v{n3}"); A(f"v_lshl_or_b32 v{u}, v{u+1}, 16, v{u}")
    A("s_waitcnt lgkmcnt(0)")
    mkW()
    A(f"v_mov_b32 v{u+1}, {sW}")
    A(f"v_perm_b32 v{vTag}, v{u+1}, v{u+1}, v{u}")
    A("s_waitcnt vmcnt(0)")
    A("s_cmp_lt_u32 s6, 5"); A("s_cbranch_scc0 L_nox0")
    A(f"ds_write_b16 v{aXW}, v{xold}")
    A("L_nox0:")
    A(f"v_lshlrev_b32 v{xold}, 16, v{xold}")
    stamp(1)
    WQT = TT + 16
    CK = TT + 28
    def wq_reads(tau):
        for s in range(3):
            for h in range(2):
                off = tau * 18432 + (s * 8192 if s < 2 else 10240) + h * 1024
                A(f"ds_read_b64_tr_b16 {vr(WQT + 4*s + 2*h, 2)}, v{aWQ} offset:{off}")
    if o.ldonly == 2: A("s_endpgm")
    A("s_mov_b32 s14, 18")
    wait_prog("s14", M)
    wq_reads(0)
    stamp(2)
    A("s_branch L_P2_0")

    def lds_check(name, off, nreads, reads):
        A(f"{name}:")
        A(f"ds_read_b64 {vr(CK,2)}, v{aCK} offset:{off}")
        reads()
        A(f"s_waitcnt lgkmcnt({0 if stamps else nreads})")
        A(f"v_dot2_f32_bf16 v{CK}, v{CK}, v{CK+1}, 0")
        A(f"v_cmp_u_f32 vcc, v{CK}, v{CK}")
        s = lab("ck")
        A(f"s_cbranch_vccnz {s}")
        cold.append(f"{s}:")
        cold.append(f"ds_read_b64 {vr(CK,2)}, v{aCK} offset:{off}")
        cold.append(f"s_sub_u32 {sBud}, {sBud}, 1")
        cold.append(f"s_cbranch_scc1 L_end")
        cold.append("s_waitcnt lgkmcnt(0)")
        cold.append(f"v_dot2_f32_bf16 v{CK}, v{CK}, v{CK+1}, 0")
        cold.append(f"v_cmp_u_f32 vcc, v{CK}, v{CK}")
        cold.append(f"s_cbranch_vccnz {s}")
        cold.append(f"s_branch {name}")
    def p1_core(t, rlabel, sleep, sleep0):
        A("s_waitcnt vmcnt(0)")
        A(f"v_bitop3_b32 v{t+8}, v{t}, v{t+4}, v{vTag} bitop3:0x7e")
        A(f"v_and_b32 v{t}, 0xffffff00, v{t}")
        A(f"v_and_b32 v{t+4}, 0xffffff00, v{t+4}")
        A(f"v_pk_add_f32 {vr(t+2,2)}, {vr(t+2,2)}, {vr(t+6,2)}")
        A(f"v_pk_add_f32 {vr(t,2)}, {vr(t,2)}, {vr(t+4,2)}")
        A(f"v_cmp_ne_u32_sdwa vcc, v{t+8}, 0 src0_sel:BYTE_0 src1_sel:DWORD")
        red8(t, lambda: retry("vccnz", rlabel, sleep=sleep, sleep0=sleep0))
        A(f"v_add_f32 v{xold}, v{t}, v{xold}")
        A(f"v_cvt_pk_bf16_f32 v{t+1}, v{xold}, v{xold}")
    def p1_loads(t, dst):
        dst.append(f"buffer_load_dwordx4 {vr(t,4)}, v{aL16}, {WS}, {sAPR} offen sc1")
        dst.append(f"buffer_load_dwordx4 {vr(t+4,4)}, v{aL16}, {WS}, {sAPR} offen offset:1024 sc1")
    def next_layer():
        A(f"s_add_u32 {sAPW}, {sAPW}, {APL}")
        for r in (sL, sQL, sCS, sOL0, sOL1): A(f"s_add_u32 {r}, {r}, {GL}")

    for tau in range(2):
        E = tau * EXL
        sb = 2 + 7 * tau
        K, V = KR[tau], VR[tau]
        A(f"L_P1_{tau}:")
        sk = lab("sk")
        A("s_cmp_lt_u32 s6, 5"); A(f"s_cbranch_scc0 {sk}")
        if tau == 1 and o.asp:
            s2, l = lab("sk"), lab("asp")
            A(f"s_cmp_eq_u32 {sPass}, 0"); A(f"s_cbranch_scc0 {s2}")
            A(f"s_add_u32 s16, s40, {sAPR}"); A("s_addc_u32 s17, s41, 0")
            A(f"{l}:")
            for i in range(16): A(f"s_load_dword s{20+i}, s[16:17], {i*128} glc")
            A(f"s_mov_b32 s19, {sW}")
            A("s_waitcnt lgkmcnt(0)")
            for i in range(8): A(f"s_xor_b64 s[{20+2*i}:{21+2*i}], s[{20+2*i}:{21+2*i}], s[18:19]")
            for i in range(1, 8): A(f"s_or_b64 s[20:21], s[20:21], s[{20+2*i}:{21+2*i}]")
            A("s_or_b32 s20, s20, s21"); A("s_and_b32 s20, s20, 0xff")
            retry("scc1", l, sleep=o.asp - 1)
            A(f"{s2}:")
        p1_loads(t, L)
        A(f"{sk}:")
        next_layer()
        if tau == 1:
            sk = lab("sk")
            A(f"s_cmp_eq_u32 {sPass}, 0"); A(f"s_cbranch_scc0 {sk}")
            A(f"s_add_u32 s14, {sNW}, 100")
            wait_prog("s14", M)
            A(f"{sk}:")
        wq_reads(tau)
        A("s_cmp_lt_u32 s6, 5"); A(f"s_cbranch_scc0 L_P1i_{tau}")
        cold.append(f"L_P1i_{tau}:")
        if o.idle: cold.append(f"s_sleep {o.idle}")
        cold.append(f"s_branch L_P1e_{tau}")
        A(f"L_P1w_{tau}:")
        p1_core(t, f"L_P1r_{tau}", o.sl1, o.sl1p)
        A(f"ds_write_b16 v{aXW}, v{t+1} offset:{E}")
        cold.append(f"L_P1r_{tau}:")
        p1_loads(t, cold)
        cold.append(f"s_branch L_P1w_{tau}")
        A(f"L_P1e_{tau}:")
        stamp(sb)
        def rd():
            for s in range(3): A(f"ds_read_b128 {vr(t+4*s,4)}, v{aX} offset:{E + 64*s}")
        lds_check(f"L_P2_{tau}", E + X_XI, 3, rd)
        for s in range(3):
            A(f"s_waitcnt lgkmcnt({0 if stamps else 2-s})")
            A(f"v_mfma_f32_16x16x32_bf16 {vr(D,4)}, {vr(WQT+4*s,4)}, {vr(t+4*s,4)}, {0 if s == 0 else vr(D,4)}")
        A(f"s_add_u32 {sAPR}, {sAPR}, {APL}")
        fastcmp()
        A(f"v_mov_b32_sdwa v{D}, v{vTag} dst_sel:BYTE_0 dst_unused:UNUSED_PRESERVE src0_sel:BYTE_1")
        gstore(f"buffer_store_dwordx4 {vr(D,4)}, v{aQS}, {WS}, {sL} offen")
        sk = lab("sk")
        A("s_add_u32 s7, s6, s13"); A("s_cmp_eq_u32 s7, 0"); A(f"s_cbranch_scc0 {sk}")
        for s in range(3):
            A(f"v_mfma_f32_16x16x32_bf16 {vr(D+4,4)}, {vr(t+4*s,4)}, {vr(t+4*s,4)}, {0 if s == 0 else vr(D+4,4)}")
        A("s_lshl_b32 s7, s12, 6"); A(f"s_add_u32 s7, s7, {G_ST}")
        A(f"v_and_b32 v{M}, 0x130, v{aL16}"); A(f"v_and_b32 v{M+1}, 0x100, v{aL16}"); A(f"v_add3_u32 v{M}, v{M}, v{M+1}, s7")
        A("s_mov_b64 exec, 0xf0000f")
        fastcmp()
        A(f"v_mov_b32 v{D+6}, {sW}")
        gstore(f"buffer_store_dwordx4 {vr(D+4,4)}, v{M}, {WS}, {sL} offen")
        A("s_mov_b64 exec, -1")
        A(f"{sk}:")
        stamp(sb + 1)
        if o.ldonly == 3: A("s_endpgm")
        if o.w3: A("s_waitcnt vmcnt(0)")
        def p3_loads(dst, cs):
            dst.append(f"buffer_load_dwordx4 {vr(t,4)}, v{aL16}, {WS}, {sQL} offen sc1")
            dst.append(f"buffer_load_dwordx3 {vr(t+4,3)}, v{aSTL}, {WS}, {sL} offen sc1")
            if cs: dst.append(f"buffer_load_dwordx4 {vr(t+8,4)}, v{aL16}, {WS}, {sCS} offen sc1")
        if tau == 0 and o.bthr:
            sk = lab("sk")
            A(f"s_cmp_eq_u32 {sPass}, 0"); A(f"s_cbranch_scc0 {sk}")
            A(f"s_mov_b32 s14, {o.bthr}")
            wait_prog("s14", M)
            A(f"{sk}:")
        p3_loads(L, False)
        A(f"s_cmp_eq_u32 {sPass}, 0"); A(f"s_cbranch_scc0 L_P3w_{tau}")
        A(f"buffer_load_dwordx4 {vr(t+8,4)}, v{aL16}, {WS}, {sCS} offen sc1")
        A(f"s_lshl_b32 s14, s6, 2"); A(f"s_add_u32 s14, s14, {22 if tau == 0 else 104}")
        if tau: A(f"s_add_u32 s14, s14, {sNW}")
        wait_prog("s14", M)
        k = t + 12
        A(f"v_and_b32 v{k}, 15, v0"); A(f"v_lshrrev_b32 v{k+1}, 4, v0"); A(f"v_xor_b32 v{k+1}, v{k+1}, v{k}")
        A(f"v_lshlrev_b32 v{k}, 8, v{k}"); A(f"v_lshl_add_u32 v{k}, v{k+1}, 4, v{k}")
        A(f"s_lshl_b32 s7, s6, 12"); A(f"s_add_u32 s7, s7, {L_K}"); A(f"v_add_u32 v{k}, s7, v{k}")
        for s in range(1, 4): A(f"v_xor_b32 v{k+s}, {64*s}, v{k}")
        for s in range(4): A(f"ds_read_b128 {vr(K+4*s,4)}, v{k+s}")
        A("s_waitcnt lgkmcnt(0)")
        if tau == 0: consumed(1, M)
        A(f"L_P3c_{tau}:")
        A("s_waitcnt vmcnt(0)")
        A(f"v_cmp_ne_u32_sdwa vcc, v{t+8}, v{vTag} src0_sel:BYTE_0 src1_sel:BYTE_0")
        A(f"v_and_b32 v{t+8}, 0xffffff00, v{t+8}")
        red8(t + 8, lambda: retry("vccnz", f"L_P3rc_{tau}", sleep=o.sl3p))
        cold.append(f"L_P3rc_{tau}:"); p3_loads(cold, True); cold.append(f"s_branch L_P3c_{tau}")
        A(f"v_cvt_pk_bf16_f32 v{t+9}, v{t+8}, v{t+8}")
        A(f"ds_write_b16 v{aQW}, v{t+9} offset:{E + 640}")
        A(f"ds_write_b16 v{aQW}, v{t+9} offset:{E + 640 + 2*EXL}")
        A(f"L_P3w_{tau}:")
        A("s_waitcnt vmcnt(0)")
        A(f"v_cmp_ne_u32_sdwa vcc, v{t}, v{vTag} src0_sel:BYTE_0 src1_sel:BYTE_0")
        A(f"v_and_b32 v{t}, 0xffffff00, v{t}")
        red8(t, lambda: retry("vccnz", f"L_P3r_{tau}", sleep=o.sl3, sleep0=o.sl3p))
        cold.append(f"L_P3r_{tau}:"); p3_loads(cold, False); cold.append(f"s_branch L_P3w_{tau}")
        A(f"v_cvt_pk_bf16_f32 v{t+1}, v{t}, v{t}")
        A(f"ds_write_b16 v{aQW}, v{t+1} offset:{E}")
        A(f"v_cmp_ne_u32 vcc, {sW}, v{t+6}")
        for i, oc in enumerate(OCT):
            A(f"v_add_f32_dpp v{t+4}, v{t+4}, v{t+4} {oc} {DPPM}")
            A(f"v_add_f32_dpp v{t+5}, v{t+5}, v{t+5} {oc} {DPPM}")
            if i == 0: retry("vccnz", f"L_P3r_{tau}", sleep=o.sl3, sleep0=o.sl3p)
        al, be = M + 2, M + 3
        A(f"v_mul_f32 v{M+1}, s100, v{t+5}")
        A(f"v_mul_f32 v{t+6}, v{M+1}, v{M+1}")
        A(f"v_fma_f32 v{M}, v{t+4}, s100, -v{t+6}")
        stamp(sb + 2)
        def rd():
            for s in range(4): A(f"ds_read_b128 {vr(t+4*s,4)}, v{aQR} offset:{E + 64*s}")
        lds_check(f"L_P4_{tau}", E + X_QI, 4, rd)
        fill = [[f"v_max_f32 v{M}, 0, v{M}", f"v_add_f32 v{M}, 0x3727c5ac, v{M}"], [f"v_rsq_f32 v{M}, v{M}"],
                [f"v_mul_f32 v{al}, s101, v{M}", f"v_mul_f32 v{be}, -v{M+1}, v{al}"], []]
        for s in range(4):
            A(f"s_waitcnt lgkmcnt({0 if stamps else 3-s})")
            A(f"v_mfma_f32_16x16x32_bf16 {vr(D,4)}, {vr(t+4*s,4)}, {vr(K+4*s,4)}, {0 if s == 0 else vr(D,4)}")
            for f in fill[s]: A(f)
        x = t + 16
        A(f"v_mul_f32 v{x}, v{be}, v{D+1}")
        A(f"v_fmac_f32 v{x}, v{al}, v{D}")
        A(f"v_max_f32_dpp v{x+1}, v{x}, v{x} {OCT[0]} {DPPM}")
        A(f"v_max_f32_dpp v{x+1}, v{x+1}, v{x+1} {OCT[1]} {DPPM}")
        A(f"v_max_f32_dpp v{x+1}, v{x+1}, v{x+1} {OCT[2]} {DPPM}")
        A(f"v_max_f32_dpp v{x+1}, v{x+1}, v{x+1} row_ror:8 {DPPM}")
        A(f"v_sub_f32 v{x+2}, v{x}, v{x+1}")
        A(f"v_exp_f32 v{x+2}, v{x+2}")
        A(f"ds_write_b32 v{aMW}, v{x+1} offset:{E}")
        A(f"v_cvt_pk_bf16_f32 v{x+3}, v{x+2}, v{x+2}")
        A(f"ds_write_b16 v{aPW}, v{x+3} offset:{E}")
        for oc in OCT + ["row_ror:8"]:
            A(f"v_add_f32_dpp v{x+2}, v{x+2}, v{x+2} {oc} {DPPM}")
        A(f"ds_write_b32 v{aMW}, v{x+2} offset:{E + 64}")
        stamp(sb + 3)
        sk = lab("sk")
        A(f"s_cmp_eq_u32 {sPass}, 0"); A(f"s_cbranch_scc0 {sk}")
        if tau == 0: A("s_mov_b32 s14, 82")
        else: A(f"s_add_u32 s14, {sNW}, 164")
        wait_prog("s14", M)
        A(f"v_add_u32 v{M}, {L_V}, v{aWQ}")
        for s in range(4):
            for h in range(2):
                A(f"ds_read_b64_tr_b16 {vr(V + 4*s + 2*h, 2)}, v{M} offset:{s*8192 + h*1024}")
        A("s_waitcnt lgkmcnt(0)")
        if tau == 0:
            consumed(2, M)
            A(f"v_mov_b32 v{M}, {L_GO}")
            A("L_gow:")
            A(f"ds_read_b32 v{M+1}, v{M}")
            A("s_waitcnt lgkmcnt(0)")
            A(f"v_readfirstlane_b32 {sFast}, v{M+1}")
            A(f"s_cmp_lt_i32 {sFast}, 0")
            retry("scc1", "L_gow", sleep=2)
        A(f"{sk}:")
        def rd():
            A(f"ds_read_b32 v{x}, v{aMR} offset:{E}")
            for s in range(4): A(f"ds_read_b128 {vr(t+4*s,4)}, v{aPR+s} offset:{E}")
        lds_check(f"L_P5_{tau}", E + X_PI, 5, rd)
        fill = [f"v_max_f32_dpp v{x+1}, v{x}, v{x} {OCT[0]} {DPPM}",
                f"v_max_f32_dpp v{x+1}, v{x+1}, v{x+1} {OCT[1]} {DPPM}",
                f"v_max_f32_dpp v{x+1}, v{x+1}, v{x+1} {OCT[2]} {DPPM}",
                f"v_sub_f32 v{x+2}, v{x}, v{x+1}"]
        for s in range(4):
            A(f"s_waitcnt lgkmcnt({0 if stamps else 3-s})")
            A(f"v_mfma_f32_16x16x32_bf16 {vr(D,4)}, {vr(t+4*s,4)}, {vr(V+4*s,4)}, {0 if s == 0 else vr(D,4)}")
            A(fill[s])
        A(f"v_exp_f32 v{x+2}, v{x+2}")
        A(f"ds_read_b32 v{x+5}, v{aMR} offset:{E + 64}")
        fastcmp()
        A(f"v_mul_f32_dpp v{x+3}, v{x+2}, v{D} row_newbcast:0 {DPPM}")
        A(f"v_mul_f32_dpp v{x+4}, v{x+2}, v{D+1} row_newbcast:1 {DPPM}")
        A(f"v_fmac_f32_dpp v{x+3}, v{x+2}, v{D+2} row_newbcast:2 {DPPM}")
        A(f"v_fmac_f32_dpp v{x+4}, v{x+2}, v{D+3} row_newbcast:3 {DPPM}")
        A(f"v_add_f32 v{x+6}, v{x+3}, v{x+4}")
        A(f"v_add_f32 v{x+3}, v{x+3}, v{x+4}")
        A(f"v_permlane16_swap_b32 v{x+3}, v{x+6}")
        A(f"v_add_f32 v{x+3}, v{x+3}, v{x+6}")
        A(f"v_cvt_pk_bf16_f32 v{x+4}, v{x+3}, v{x+3}")
        gstore(f"buffer_store_short v{x+4}, v{aOS}, {WS}, {sL} offen")
        sk, l = lab("sk"), lab("ml")
        A("s_cmp_eq_u32 s6, 0"); A(f"s_cbranch_scc0 {sk}")
        A("s_lshl_b32 s7, s5, 4"); A(f"s_add_u32 s7, s7, {G_ML}"); A(f"v_lshrrev_b32 v{M}, 2, v0"); A(f"v_add_u32 v{M}, s7, v{M}")
        A(f"v_mov_b32 v{x+6}, v{x+1}")
        A(f"{l}:")
        A("s_waitcnt lgkmcnt(0)")
        A(f"v_mul_f32 v{x+7}, v{x+5}, v{x+2}")
        for oc in OCT: A(f"v_add_f32_dpp v{x+7}, v{x+7}, v{x+7} {oc} {DPPM}")
        A("s_mov_b64 exec, s[98:99]")
        fastcmp()
        gstore(f"buffer_store_dwordx2 {vr(x+6,2)}, v{M}, {WS}, {sL} offen")
        A("s_mov_b64 exec, -1")
        A(f"v_cmp_u_f32 vcc, v{x+7}, v{x+7}")
        r = lab("mlr")
        retry("vccnz", r)
        cold.append(f"{r}:"); cold.append(f"ds_read_b32 v{x+5}, v{aMR} offset:{E + 64}"); cold.append(f"s_branch {l}")
        A(f"{sk}:")
        stamp(sb + 4)
        end6 = f"L_P6e_{tau}"
        A(f"s_cmp_eq_u32 s15, {tau}"); A(f"s_cbranch_scc0 {end6}")
        def p6_loads(dst):
            dst.append(f"buffer_load_dwordx4 {vr(ML,4)}, v{aML}, {WS}, {sL} offen sc1")
            for s in range(8): dst.append(f"buffer_load_dwordx4 {vr(t+4*s,4)}, v{aL16}, {WS}, {sOL0 if s < 4 else sOL1} offen offset:{1024*(s%4)} sc1")
        A("s_waitcnt lgkmcnt(0)" + (" vmcnt(0)" if o.w6 else ""))
        if o.csl:
            sk = lab("sk")
            A(f"s_cmp_eq_u32 {sPass}, 0"); A(f"s_cbranch_scc0 {sk}"); A(f"s_sleep {o.csl}"); A(f"{sk}:")
        p6_loads(L)
        cold.append(f"L_P6_{tau}:"); p6_loads(cold); cold.append(f"s_branch L_P6w_{tau}")
        sk = lab("sk")
        A(f"s_cmp_eq_u32 {sPass}, 0"); A(f"s_cbranch_scc0 {sk}")
        if tau == 0: A(f"s_add_u32 s14, {sNW}, 82")
        else: A(f"s_lshl_b32 s14, {sNW}, 1"); A("s_add_u32 s14, s14, 164")
        wait_prog("s14", M)
        k = D
        A(f"v_lshrrev_b32 v{k}, 4, v0"); A(f"v_bfe_u32 v{k+1}, v0, 2, 2"); A(f"v_lshl_add_u32 v{k+1}, v{k}, 3, v{k+1}")
        A(f"v_and_b32 v{k}, 1, v{k}")
        A(f"v_and_b32 v{k+2}, 3, v0"); A(f"v_lshlrev_b32 v{k+2}, 3, v{k+2}"); A(f"v_add_u32 v{k+2}, {L_WO}, v{k+2}")
        A("s_and_b32 s7, s6, 3")
        w64, wd = lab("w64"), lab("wd")
        A(f"s_cmp_eq_u32 {sNW}, 32"); A(f"s_cbranch_scc1 {w64}")
        A(f"v_xor_b32 v{k}, s7, v{k}"); A(f"v_lshl_add_u32 v{k+2}, v{k}, 5, v{k+2}"); A(f"v_lshl_add_u32 v{k+2}, v{k+1}, 6, v{k+2}")
        for s in range(8):
            for h in range(2): A(f"ds_read_b64_tr_b16 {vr(WO + 4*s + 2*h, 2)}, v{k+2} offset:{s*2048 + h*256}")
        A(f"s_branch {wd}")
        A(f"{w64}:")
        A(f"v_bfe_u32 v{k+3}, v0, 3, 1"); A(f"v_lshl_or_b32 v{k}, v{k}, 1, v{k+3}")
        A(f"v_xor_b32 v{k}, s7, v{k}"); A(f"v_lshl_add_u32 v{k+2}, v{k}, 5, v{k+2}"); A(f"v_lshl_add_u32 v{k+2}, v{k+1}, 7, v{k+2}")
        for s in range(8):
            for h in range(2): A(f"ds_read_b64_tr_b16 {vr(WO + 4*s + 2*h, 2)}, v{k+2} offset:{s*4096 + h*512}")
        A(f"{wd}:")
        A("s_waitcnt lgkmcnt(0)")
        if tau == 0: consumed(3, M + 2)
        A(f"{sk}:")
        stamp(sb + 5)
        A(f"L_P6w_{tau}:")
        A("s_waitcnt vmcnt(8)")
        m0, l0, m1, l1 = ML, ML + 1, ML + 2, ML + 3
        fl = []
        fl.append(f"v_max_f32_dpp v{M}, v{m0}, v{m0} {OCT[0]} {DPPM}"); fl.append(f"v_max_f32_dpp v{M+1}, v{m1}, v{m1} {OCT[0]} {DPPM}")
        for oc in OCT[1:]:
            fl.append(f"v_max_f32_dpp v{M}, v{M}, v{M} {oc} {DPPM}"); fl.append(f"v_max_f32_dpp v{M+1}, v{M+1}, v{M+1} {oc} {DPPM}")
        fl.append(f"v_sub_f32 v{m0}, v{m0}, v{M}"); fl.append(f"v_sub_f32 v{m1}, v{m1}, v{M+1}")
        fl.append(f"v_exp_f32 v{m0}, v{m0}"); fl.append(f"v_exp_f32 v{m1}, v{m1}")
        fl.append(f"v_mul_f32 v{l0}, v{l0}, v{m0}"); fl.append(f"v_mul_f32 v{l1}, v{l1}, v{m1}")
        for oc in OCT:
            fl.append(f"v_add_f32_dpp v{l0}, v{l0}, v{l0} {oc} {DPPM}"); fl.append(f"v_add_f32_dpp v{l1}, v{l1}, v{l1} {oc} {DPPM}")
        fl.append(f"v_rcp_f32 v{l0}, v{l0}"); fl.append(f"v_rcp_f32 v{l1}, v{l1}")
        fl.append(f"v_mul_f32 v{m0}, v{m0}, v{l0}"); fl.append(f"v_mul_f32 v{m1}, v{m1}, v{l1}")
        A(fl.pop(0)); A(fl.pop(0))
        for s in range(8):
            d = D + 4 * (s // 4)
            A(f"s_waitcnt vmcnt({7-s})")
            A(f"v_mfma_f32_16x16x32_bf16 {vr(d,4)}, {vr(t+4*s,4)}, {vr(WO+4*s,4)}, {0 if s % 4 == 0 else vr(d,4)}")
            A(fl.pop(0)); A(fl.pop(0))
        while fl: A(fl.pop(0))
        A(f"v_mul_f32_dpp v{M}, v{m0}, v{D} row_newbcast:0 {DPPM}")
        A(f"v_mul_f32_dpp v{M+1}, v{m0}, v{D+1} row_newbcast:1 {DPPM}")
        A(f"v_mul_f32_dpp v{M+2}, v{m0}, v{D+2} row_newbcast:2 {DPPM}")
        A(f"v_fmac_f32_dpp v{M}, v{m0}, v{D+3} row_newbcast:3 {DPPM}")
        A(f"v_fmac_f32_dpp v{M+1}, v{m1}, v{D+4} row_newbcast:0 {DPPM}")
        A(f"v_fmac_f32_dpp v{M+2}, v{m1}, v{D+5} row_newbcast:1 {DPPM}")
        A(f"v_fmac_f32_dpp v{M}, v{m1}, v{D+6} row_newbcast:2 {DPPM}")
        A(f"v_fmac_f32_dpp v{M+1}, v{m1}, v{D+7} row_newbcast:3 {DPPM}")
        A(f"v_add_f32 v{M}, v{M}, v{M+2}")
        A(f"v_add_f32 v{M+2}, v{M}, v{M+1}")
        A(f"v_add_f32 v{M}, v{M}, v{M+1}")
        A(f"v_cmp_u_f32 vcc, v{M}, v{M}")
        A(f"v_permlane16_swap_b32 v{M}, v{M+2}")
        retry("vccnz", f"L_P6_{tau}", sleep=o.sl6, sleep0=o.sl6p)
        A(f"v_add_f32 v{M}, v{M}, v{M+2}")
        A(f"v_mov_b32_sdwa v{M}, v{vTag} dst_sel:BYTE_0 dst_unused:UNUSED_PRESERVE src0_sel:BYTE_2")
        A(f"buffer_store_dword v{M}, v{aAS}, {WS}, {sAPW} offen sc1")
        if R > 2:
            sk = lab("sk")
            if tau == 1: A(f"s_cmp_eq_u32 {sPass}, 0"); A(f"s_cbranch_scc0 {sk}")
            for i in range(1, R // 2):
                A(f"s_add_u32 s7, {sAPW}, {2*i*CST}")
                A(f"buffer_store_dword v{M}, v{aAS}, {WS}, s7 offen sc1")
            if tau == 1: A(f"{sk}:")
        stamp(sb + 6)
        if o.gate:
            if o.gate == 2: A("s_waitcnt vmcnt(0)")
            if o.gsl: A(f"s_sleep {o.gsl}")
            A(f"ds_write_b32 v{aMR}, v{aMR} offset:{E + 128}")
        A(f"s_branch L_P6f_{tau}")
        A(f"{end6}:")
        if tau == 0:
            sk = lab("sk")
            A(f"s_cmp_eq_u32 {sPass}, 0"); A(f"s_cbranch_scc0 {sk}")
            consumed(3, M + 2)
            A(f"{sk}:")
        if o.gate:
            l = lab("gt")
            A(f"{l}:")
            A(f"ds_read_b32 v{M}, v{aMR} offset:{E + 128}")
            A("s_waitcnt lgkmcnt(0)")
            A(f"v_cmp_eq_u32 vcc, -1, v{M}")
            retry("vccnz", l, sleep=1)
        A(f"L_P6f_{tau}:")
    A(f"s_cmp_eq_u32 {sPass}, 0"); A("s_cbranch_scc0 L_final")
    A(f"s_mov_b32 {sPass}, 1")
    A(f"v_and_b32 v{M}, 15, v0"); A(f"v_mov_b32 v{M+1}, {OOBV}"); A(f"v_cmp_eq_u32 vcc, 1, v{M}"); A(f"v_cndmask_b32 v{aQS}, v{aQS}, v{M+1}, vcc")
    for a in (aXW, aX, aQW, aQR, aPW, aMW, aPR, aPR + 1, aPR + 2, aPR + 3, aMR, aCK):
        A(f"v_add_u32 v{a}, {2*EXL}, v{a}")
    if stamps:
        A("s_waitcnt lgkmcnt(0)")
        for i in range(16): A(f"v_writelane_b32 v{vST}, s{64+2*i}, {i}")
    A("s_branch L_P1_0")
    A("L_final:")
    A("s_cmp_lt_u32 s59, 8"); A("s_cbranch_scc0 L_fin_done")
    A("s_cmp_lt_u32 s6, 5"); A("s_cbranch_scc0 L_fin_ep")
    A("L_PF:")
    p1_loads(t, L)
    p1_core(t, "L_PF", 0, 0)
    A(f"buffer_store_short v{t+1}, v{aOUT}, s[52:55], 0 offen")
    A("s_branch L_fin_done")
    A("L_fin_ep:")
    A("s_lshl_b32 s7, s59, 3"); A("s_add_u32 s7, s7, s6"); A("s_cmp_eq_u32 s7, 7"); A("s_cbranch_scc0 L_fin_done")
    A(f"v_mov_b32 v{M}, {sW}")
    A("s_mov_b64 exec, 1")
    A(f"buffer_store_dword v{M}, v{aL16}, {WS}, 0 offen sc1")
    A("s_mov_b64 exec, -1")
    A("L_fin_done:")
    if stamps:
        stamp(1)
        A("s_waitcnt vmcnt(0)")
        stamp(0)
        A("s_waitcnt lgkmcnt(0)")
        for i in range(2, 16): A(f"v_writelane_b32 v{vST}, s{64+2*i}, {14 + i}")
        A(f"v_writelane_b32 v{vST}, s66, 30"); A(f"v_writelane_b32 v{vST}, s64, 31")
        A("L_stamps:")
        A("s_mov_b64 s[8:9], s[40:41]"); A("s_mov_b32 s10, 268435456"); A("s_mov_b32 s11, 0x20000")
        A("s_mul_i32 s7, s2, 10"); A("s_add_u32 s7, s7, s3"); A("s_lshl_b32 s7, s7, 8"); A(f"s_add_u32 s7, s7, {128 << 20}")
        A("v_lshlrev_b32 v1, 3, v0")
        A(f"v_mov_b32 v2, v{vST}"); A("v_mov_b32 v3, 0")
        A("s_mov_b32 exec_lo, -1"); A("s_mov_b32 exec_hi, 0")
        A("buffer_store_dwordx2 v[2:3], v1, s[8:11], s7 offen")
    A("L_end:")
    A("s_endpgm")
    L += cold
    body = finalize(L)
    out = [HDR.rstrip("\n"), f"; @launch grid=(256,1,1) block=(640,1,1) lds={LDS_TOTAL}",
           '.amdgcn_target "amdgcn-amd-amdhsa--gfx950"', ".text", f".globl {NAME}_kernel", ".p2align 8", f".type {NAME}_kernel,@function"]
    out += [(l if l.endswith(":") else "    " + l) for l in body]
    out += ['.section .rodata,"a"', ".p2align 6", f".amdhsa_kernel {NAME}_kernel", "  .amdhsa_next_free_vgpr 168", "  .amdhsa_next_free_sgpr 102",
            "  .amdhsa_accum_offset 168", "  .amdhsa_group_segment_fixed_size 0", "  .amdhsa_kernarg_size 104", "  .amdhsa_user_sgpr_count 2",
            "  .amdhsa_user_sgpr_kernarg_segment_ptr 1", "  .amdhsa_system_sgpr_workgroup_id_x 1", ".end_amdhsa_kernel"]
    return "\n".join(out) + "\n"

if __name__ == "__main__":
    ap = argparse.ArgumentParser()
    ap.add_argument("out")
    for k, d in OPTS.items(): ap.add_argument("--" + k, type=int, default=d)
    a = ap.parse_args()
    if a.T64 == 20: a.T64 = a.T
    open(a.out, "w").write(gen(a))
```

```python
import sys, argparse
from asmlib import finalize
NAME = "interleave_layers__sliding_block_cached__sliding_block_cached__decode"
HDR = open("cdna_kernels/" + NAME + ".s.ref").read().split("; Override launch")[0]

GRP0 = 4096
G_QP, G_CS, G_ST, G_OP = 0, 16384, 32768, 33792
OPB = 8448
G_ML = G_OP + 8192
G_S2 = G_OP + 2 * OPB
GS = G_S2 + 384 + 256
FLB = GRP0 + 16 * GS
APB = FLB + 256 * 128
CST = 73728 + 128
OOBV = 0x7FFF0000
L_WQ, L_K, L_V, L_WO, EX = 0, 36864, 69632, 102400, 135168
EXL = 4992
X_XI, X_QI, X_PI, X_MI, X_RED = 0, 832, 2112, 2752, 2944
X_TR = X_PI + 256
L_PROG = EX + 4 * EXL
L_CONS = L_PROG + 64
L_GO = L_PROG + 128
LDS_TOTAL = EX + 20480
DPPM = "row_mask:0xf bank_mask:0xf"
OPTS = dict(T=20, T64=20, nont=0, stamps=0, nofast=0, budget=400000, cprio=0, lprio=0, gate=2, w3=1, w6=1, sl1=0, sl3=0, sl6=0,
            pre=1, preap=0, gsl=0, idle=0, sl3p=2, sl6p=2, sl1p=2, ldonly=0, nohelp=0, bthr=40, csl=0, hsl=0, apthr=0, qfl=0, wp=63, bsl=0, asl=0, l0f=0, pfm=1, fr=3, frd=4, ah=1, ahs=2, TB=0, TB64=0, hold=0, hx=0, cap=0, pn=1, pst=0, pfl=1, rot=0, il=0)

def vr(b, n=1): return f"v{b}" if n == 1 else f"v[{b}:{b+n-1}]"

def gen(o):
    L = []
    A = L.append
    T, stamps = o.T, o.stamps
    APL = 8 * CST
    NT = "" if o.nont else " nt"
    KR = [8, 40]; VR = [24, 56]; WO = 72; TT = 104; ML = 136; D = 140; M = 148
    aL16, xold, aXW, aX, aWQ, aQS, vTag = 1, 2, 3, 4, 5, 6, 7
    aSTL, aQW, aQR, aPW, aMW, aPR, aMR, aOS, aCK, aML, aAS, aOUT, vST = 152, 153, 154, 155, 156, 157, 161, 162, 163, 164, 165, 166, 167
    WS = "s[8:11]"
    sL, sQL, sCS, sPass, sBud, sNW, sFast = "s60", "s62", "s63", "s42", "s43", "s57", "s58"
    sW = "s18"
    sO, sOL, sAPR, sAPW, sST, sRED = ["s60", "s20"], ["s21", "s22"], ["s23", "s24"], ["s25", "s26"], "s27", "s28"
    sSM, sSX = "s29", "s[30:31]"
    vSel, aQL, aRW = 138, 139, 144
    def stamp(i):
        if stamps: A(f"s_memrealtime s[{64+2*i}:{65+2*i}]")
    uid = [0]
    def lab(p):
        uid[0] += 1; return f"L_{p}_{uid[0]}"
    CNT = ["s32", "s33", "s34", "s35", "s38", "s39"]; vCN = 145
    def cnt(dst, i):
        if stamps: dst.append(f"s_add_u32 {CNT[i]}, {CNT[i]}, 1")
    cold = []
    def retry(cond, target, sleep=0, sleep0=0):
        s = lab("rt")
        A(f"s_cbranch_{cond} {s}")
        cold.append(f"{s}:")
        if sleep: cold.append(f"s_sleep {sleep}")
        if sleep0:
            k = lab("rs")
            cold.append(f"s_cmp_eq_u32 {sPass}, 0"); cold.append(f"s_cbranch_scc0 {k}"); cold.append(f"s_sleep {sleep0}"); cold.append(f"{k}:")
        cold.append(f"s_sub_u32 {sBud}, {sBud}, 1")
        cold.append(f"s_cbranch_scc0 {target}")
        cold.append("s_endpgm")
    def wait_prog(thr_sgpr, tmp, sleep=1):
        l = lab("wp")
        A(f"v_mov_b32 v{tmp}, {L_PROG}")
        A(f"{l}:")
        A(f"ds_read_b32 v{tmp+1}, v{tmp}")
        A("s_waitcnt lgkmcnt(0)")
        A(f"v_cmp_gt_i32 vcc, {thr_sgpr}, v{tmp+1}")
        retry("vccnz", l, sleep=sleep)
    def consumed(stage, tmp):
        A(f"s_lshl_b32 s7, s6, 2")
        A(f"s_add_u32 s7, s7, {L_CONS}")
        A(f"v_mov_b32 v{tmp}, s7")
        A(f"v_mov_b32 v{tmp+1}, {stage}")
        A(f"ds_write_b32 v{tmp}, v{tmp+1}")
    def gstore(ins):
        if not o.nofast:
            a, b = lab("sl"), lab("sd")
            A(f"s_cbranch_scc1 {a}")
            A(ins)
            A(f"{b}:")
            cold.append(f"{a}:"); cold.append("s_nop 7"); cold.append(ins + " sc1"); cold.append(f"s_branch {b}")
        else:
            A(ins + " sc1")
    def ackwait(bit, slp, extra=""):
        if (o.wp >> bit) & 1:
            A("s_waitcnt vmcnt(0)" + extra)
            if slp:
                sk = lab("sk"); A(f"s_cmp_eq_u32 {sPass}, 0"); A(f"s_cbranch_scc0 {sk}"); A(f"s_sleep {slp}"); A(f"{sk}:")
            return
        a, b = lab("aw"), lab("aw")
        A(f"s_cmp_eq_u32 {sPass}, 0"); A(f"s_cbranch_scc1 {a}")
        A("s_waitcnt vmcnt(0)" + extra)
        A(f"{b}:")
        cold.append(f"{a}:")
        if extra: cold.append("s_waitcnt" + extra)
        if slp: cold.append(f"s_sleep {slp}")
        cold.append(f"s_branch {b}")
    def fastcmp(): A(f"s_cmp_eq_u32 {sFast}, 0")
    def red8(t, mid=None):
        A(f"v_permlane32_swap_b32 v{t+2}, v{t+3}")
        if mid: mid()
        A(f"v_permlane32_swap_b32 v{t}, v{t+1}")
        A(f"v_add_f32 v{t+2}, v{t+2}, v{t+3}")
        A(f"v_add_f32 v{t}, v{t}, v{t+1}")
        A(f"v_permlane16_swap_b32 v{t}, v{t+2}")
        A(f"v_add_f32 v{t}, v{t}, v{t+2}")
        A(f"v_add_f32_dpp v{t}, v{t}, v{t} row_ror:8 {DPPM}")
    OCT = ["quad_perm:[1,0,3,2]", "quad_perm:[2,3,0,1]", "row_half_mirror"]
    def mkW():
        A(f"s_and_b32 {sW}, {sW}, 0x7f7f7f7f"); nextW()
    def nextW():
        A(f"s_add_u32 {sW}, {sW}, 0x07050301"); A(f"s_and_b32 {sW}, {sW}, 0x7f7f7f7f")

    A(f"{NAME}_kernel:")
    stamp(0)
    A("s_cmp_ge_u32 s2, 256")
    A("s_cbranch_scc1 L_end")
    A("s_load_dwordx16 s[16:31], s[0:1], 0")
    A("s_load_dwordx8 s[32:39], s[0:1], 64")
    A("s_load_dwordx2 s[40:41], s[0:1], 96")
    A("v_lshrrev_b32 v1, 6, v0")
    A("v_and_b32 v0, 63, v0")
    A("v_readfirstlane_b32 s3, v1")
    A("s_and_b32 s4, s2, 7"); A("s_lshl_b32 s4, s4, 1"); A("s_lshr_b32 s5, s2, 7"); A("s_add_u32 s4, s4, s5")
    A("s_lshr_b32 s5, s2, 3"); A("s_and_b32 s5, s5, 15")
    A("s_cmp_ge_u32 s5, 14"); A(f"s_cselect_b32 {sNW}, 32, 16")
    A(f"s_mov_b32 {sBud}, {o.budget}")
    A("s_and_b32 s12, s5, 7")
    A("s_lshr_b32 s13, s5, 3")
    A("s_cmp_eq_u32 s3, 0")
    A("s_cbranch_scc0 L_compute")

    if stamps: A("s_memtime s[72:73]")
    if o.lprio: A(f"s_setprio {o.lprio}")
    A("v_lshrrev_b32 v1, 4, v0")
    A("v_and_b32 v2, 15, v0")
    A("v_lshlrev_b32 v3, 1, v1")
    A("v_xor_b32 v3, v3, v2")
    A("v_lshlrev_b32 v3, 4, v3")
    A("v_lshl_add_u32 v10, v1, 13, v3")
    A("v_xor_b32 v11, 0x80, v10")
    A("s_mul_i32 s60, s12, %d" % (72 * 8192))
    A("s_lshl_b32 s7, s4, 1"); A("s_add_u32 s7, s7, s13"); A("s_lshl_b32 s7, s7, 8"); A("s_add_u32 s60, s60, s7")
    A("s_mov_b32 s46, 4718592"); A("s_mov_b32 s47, 0x20000")
    A(f"v_mov_b32 v20, {L_PROG}")
    A("v_lshl_add_u32 v12, v1, 8, v3")
    A("v_xor_b32 v13, 0x80, v12")
    A("v_xor_b32 v3, v1, v2")
    A("v_lshlrev_b32 v3, 4, v3")
    A("v_lshl_add_u32 v14, v1, 8, v3")
    A("v_xor_b32 v15, 0x40, v14"); A("v_xor_b32 v16, 0x80, v14"); A("v_xor_b32 v17, 0xc0, v14")
    A("s_lshl_b32 s61, s13, 24"); A("s_lshl_b32 s7, s4, 20"); A("s_add_u32 s61, s61, s7")
    A(f"s_lshl_b32 s7, s12, {15 if not o.il else 9 + o.il}"); A("s_add_u32 s61, s61, s7"); A("s_add_u32 s61, s61, %d" % (3072 * 256))
    A("s_mul_i32 s62, s4, %d" % (256 * 1152))
    A("s_lshl_b32 s7, s5, 6"); A("s_cmp_eq_u32 s5, 15"); A("s_cselect_b32 s7, 1024, s7"); A("s_add_u32 s62, s62, s7")
    A("v_lshrrev_b32 v4, 2, v0"); A("v_and_b32 v5, 3, v0"); A("v_lshrrev_b32 v6, 5, v0"); A("v_lshlrev_b32 v6, 1, v6")
    A("v_xor_b32 v5, v5, v6"); A("v_lshlrev_b32 v5, 4, v5"); A("v_mul_u32_u24 v4, 1152, v4"); A("v_add_u32 v18, v4, v5")
    A("v_mov_b32 v19, v18")
    A("s_mov_b32 s63, %d" % (16 * 1152))
    A("s_cmp_ge_u32 s5, 14")
    A("s_cbranch_scc0 L_ld_wo_done")
    A("v_lshrrev_b32 v4, 3, v0"); A("v_and_b32 v5, 7, v0"); A("v_and_b32 v6, 1, v1"); A("v_lshlrev_b32 v6, 1, v6")
    A("v_xor_b32 v5, v5, v6"); A("v_lshlrev_b32 v5, 4, v5"); A("v_mul_u32_u24 v4, 1152, v4"); A("v_add_u32 v18, v4, v5")
    A("v_xor_b32 v5, 0x40, v5"); A("v_add_u32 v19, v4, v5")
    A("s_mov_b32 s63, %d" % (8 * 1152))
    A("L_ld_wo_done:")
    for b in (50, 54): A(f"s_mov_b32 s{b}, 33554432"); A(f"s_mov_b32 s{b+1}, 0x20000")
    A("s_mov_b32 s58, 4718592"); A("s_mov_b32 s59, 0x20000")
    A(f"s_lshr_b32 s15, {sNW}, 2")
    A("v_and_b32 v22, 7, v0"); A("v_lshlrev_b32 v22, 2, v22"); A(f"v_add_u32 v22, {L_CONS}, v22")
    A("s_waitcnt lgkmcnt(0)")
    A("s_mov_b64 s[44:45], s[22:23]"); A("s_mov_b64 s[48:49], s[18:19]"); A("s_mov_b64 s[52:53], s[20:21]"); A("s_mov_b64 s[56:57], s[24:25]")
    if o.rot >= 10:
        ra, rb = (o.rot // 10) % 10, o.rot % 10
        A(f"s_mul_i32 s95, s4, {ra}"); A(f"s_mul_i32 s7, s13, {rb}"); A("s_add_u32 s95, s95, s7"); A(f"s_lshl_b32 s95, s95, {12 + o.il}"); A("s_and_b32 s95, s95, 0x3ffff")
    if o.rot == 1: A("s_lshl_b32 s95, s5, 11")
    if o.rot == 2: A("s_mul_i32 s95, s2, 1024"); A("s_and_b32 s95, s95, 0x7fff")
    if o.rot == 3: A("s_lshl_b32 s95, s4, 11")
    if o.rot == 4: A("s_mul_i32 s95, s4, 5"); A("s_mul_i32 s7, s5, 3"); A("s_add_u32 s95, s95, s7"); A("s_lshl_b32 s95, s95, 10"); A("s_and_b32 s95, s95, 0x7fff")
    def loader(TA, TB):
        cur = [TA]; mono = [0]; kvi = [0]
        def ld(v, srd, step):
            A(f"s_waitcnt vmcnt({cur[0]-1})")
            A(f"buffer_load_dwordx4 v{v}, s[{srd}:{srd+3}], s96 offen{NT} lds")
            if mono[0]: A("v_max_i32 v24, v24, v21"); A("ds_write_b32 v20, v24")
            else: A("ds_write_b32 v20, v21")
            if step == "kv":
                if o.rot and o.il:
                    kvi[0] += 1
                    blk = 1 << (o.il - 1)
                    if kvi[0] % blk: A("s_add_u32 s96, s96, 1024")
                    else: A(f"s_add_u32 s95, s95, {8192 * blk}"); A("s_and_b32 s95, s95, 0x3ffff"); A("s_add_u32 s96, s95, s61")
                elif o.rot:
                    A("s_add_u32 s95, s95, 1024"); A("s_and_b32 s95, s95, 0x7fff"); A("s_add_u32 s96, s95, s61")
                elif o.il:
                    kvi[0] += 1
                    blk = 1 << (o.il - 1)
                    A(f"s_add_u32 s96, s96, {1024 if kvi[0] % blk else 1024 + 7 * 1024 * blk}")
                else: A("s_add_u32 s96, s96, 1024")
            else: A(f"s_add_u32 s96, s96, {step}")
            A("s_add_u32 m0, m0, 1024")
            A("v_add_u32 v21, 1, v21")
        def seg(vs, srd, step, base, ldsb, iters):
            l = lab("seg")
            if base is not None:
                if step == "kv" and o.rot: A("s_add_u32 s96, s95, s61")
                else: A(f"s_mov_b32 s96, {base}")
                A(f"s_mov_b32 m0, {ldsb}")
            if iters == 0: return
            A(f"s_mov_b32 s97, {iters}")
            A(f"{l}:")
            for v in vs: ld(v, srd, step)
            A("s_sub_u32 s97, s97, 1"); A("s_cmp_lg_u32 s97, 0"); A(f"s_cbranch_scc1 {l}")
        def wait_cons(stage):
            l = lab("wc")
            if o.ldonly: return
            A(f"{l}:")
            A("ds_read_b32 v23, v22"); A("s_waitcnt lgkmcnt(0)")
            A(f"v_cmp_gt_i32 vcc, {stage}, v23")
            retry("vccnz", l, sleep=1)
        def drain(lo=0):
            for k in range(cur[0] - 1, lo - 1, -1):
                A(f"s_waitcnt vmcnt({k})"); A("ds_write_b32 v20, v21"); A("v_add_u32 v21, 1, v21")
            cur[0] = lo
        def setT(t):
            if t != cur[0]: A(f"v_add_u32 v21, {cur[0] - t}, v21")
            cur[0] = t
        def hold():
            if o.hold:
                drain(o.hx if o.hold == 2 else 0); wait_cons(4)
            if TB > cur[0]: A("v_add_u32 v24, -1, v21"); mono[0] = 1
            setT(TB)
        A(f"v_mov_b32 v21, {1 - TA}")
        seg([10, 10, 11, 11], 44, 32768, "s60", L_WQ, 4)
        ld(11, 44, 32768); ld(11, 44, 32768)
        A("s_barrier")
        stamp(12)
        if o.cap:
            for i, st in enumerate((13, 14, 1, 6, 7, 8, 9, 10)):
                seg([14, 15, 16, 17], 48, 1024, "s61" if i == 0 else None, L_K, 1); stamp(st)
            seg([12, 12, 13, 13], 52, 1024, "s61", L_V, 2)
            stamp(11)
            A("s_waitcnt vmcnt(57)")
            stamp(2)
            A("s_waitcnt vmcnt(0)")
            stamp(3)
            A("s_waitcnt lgkmcnt(0)")
            A(f"v_mov_b32 v{vST}, 0")
            for i in range(15): A(f"v_writelane_b32 v{vST}, s{64+2*i}, {i}")
            A("s_branch L_stamps")
        seg([14, 15, 16, 17], 48, "kv", "s61", L_K, 8)
        stamp(13)
        seg([12, 12, 13, 13], 52, "kv", "s61", L_V, 8)
        stamp(14)
        seg([18, 19, 18, 19], 56, "s63", "s62", L_WO, "s15")
        stamp(1)
        A("s_mov_b64 s[44:45], s[32:33]"); A("s_mov_b64 s[48:49], s[28:29]"); A("s_mov_b64 s[52:53], s[30:31]"); A("s_mov_b64 s[56:57], s[34:35]")
        h4 = min(o.hx // 4, 4)
        seg([10, 10, 11, 11], 44, 32768, "s60", L_WQ + 18432, h4)
        if o.hx < 18: hold()
        seg([10, 10, 11, 11], 44, 32768, None, None, 4 - h4)
        ld(11, 44, 32768); ld(11, 44, 32768)
        stamp(6)
        if o.hx >= 18: hold()
        if not o.hold: wait_cons(1)
        stamp(7)
        seg([14, 15, 16, 17], 48, "kv", "s61", L_K, 8)
        stamp(8)
        if not o.hold: wait_cons(2)
        stamp(9)
        seg([12, 12, 13, 13], 52, "kv", "s61", L_V, 8)
        stamp(10)
        mono[0] = 0
        if not o.hold: wait_cons(3)
        stamp(11)
        seg([18, 19, 18, 19], 56, "s63", "s62", L_WO, "s15")
        stamp(2)
        drain()
        stamp(3)
        if stamps:
            A("s_memtime s[74:75]")
            A("s_waitcnt lgkmcnt(0)")
            A("s_sub_u32 s72, s74, s72"); A("s_add_u32 s72, s72, s64")
            A(f"v_mov_b32 v{vST}, 0")
            for i in range(15): A(f"v_writelane_b32 v{vST}, s{64+2*i}, {i}")
            A("s_branch L_stamps")
        A("s_waitcnt lgkmcnt(0)")
        A("s_endpgm")
    TB, TB64 = o.TB or T, o.TB64 or o.TB or o.T64
    if o.T64 != T or TB64 != TB:
        A("s_cmp_ge_u32 s5, 14"); A("s_cbranch_scc1 L_ld64")
        loader(T, TB)
        A("L_ld64:")
        loader(o.T64, TB64)
    else:
        loader(T, TB)

    A("L_helper:")
    if o.nohelp == 1: A("s_barrier"); A("s_endpgm")
    for i in range(4): A(f"v_mov_b32 v{8+i}, -1")
    A("v_lshlrev_b32 v1, 4, v0")
    A(f"s_mul_i32 s6, s4, {GS}"); A(f"s_add_u32 s6, s6, {GRP0 + G_OP}")
    A("s_lshl_b32 s15, s5, 10"); A("s_add_u32 s15, s15, s6")
    A("s_lshl_b32 s14, s5, 7"); A("s_add_u32 s14, s14, s6"); A("s_add_u32 s14, s14, 16384")
    A("s_cmp_lt_u32 s5, 7"); A("s_cselect_b32 s14, s14, s15")
    A("s_lshl_b32 s7, s4, 4"); A("s_add_u32 s59, s7, s5")
    A(f"s_sub_u32 s47, s6, {G_OP}")
    A("s_mul_i32 s7, s5, 1536"); A("v_lshl_add_u32 v16, v0, 7, s7")
    A("s_and_b32 s7, s5, 7"); A("s_lshl_b32 s7, s7, 7"); A(f"s_add_u32 s7, s7, {G_ST}"); A("v_writelane_b32 v16, s7, 12")
    A("v_lshrrev_b32 v3, 3, v0"); A("v_and_b32 v4, 7, v0"); A("v_lshlrev_b32 v4, 4, v4"); A("v_lshl_add_u32 v3, v3, 11, v4")
    A("s_lshr_b32 s7, s5, 1"); A(f"s_mul_i32 s46, s7, {CST}"); A("s_and_b32 s7, s5, 1"); A(f"s_mul_i32 s7, s7, {18*2048}"); A("s_add_u32 s46, s46, s7")
    A("s_lshl_b32 s7, s4, 7"); A("s_add_u32 s46, s46, s7"); A(f"s_add_u32 s46, s46, {APB}")
    def apinit(k):
        A(f"s_add_u32 s7, s46, {k*APL}")
        A(f"buffer_store_dwordx4 v[8:11], v3, {WS}, s7 offen sc1")
        A(f"s_add_u32 s7, s46, {k*APL + 16384}")
        A(f"buffer_store_dwordx4 v[8:11], v3, {WS}, s7 offen sc1")
        A(f"s_add_u32 s7, s46, {k*APL + 32768}"); A("s_mov_b64 exec, 0xffff")
        A(f"buffer_store_dwordx4 v[8:11], v3, {WS}, s7 offen sc1")
        A("s_mov_b64 exec, -1")
    A("s_waitcnt lgkmcnt(0)")
    A(f"s_load_dword {sW}, s[40:41], 0")
    A("s_mov_b64 s[8:9], s[40:41]"); A("s_mov_b32 s10, 268435456"); A("s_mov_b32 s11, 0x20000")
    if o.l0f == 1:
        A("s_mov_b64 exec, 0x1fff")
        A(f"buffer_load_dword v17, v16, {WS}, s47 offen" + {0: "", 1: " sc1", 2: " nt"}[o.pfm])
        A("s_mov_b64 exec, -1")
    A(f"buffer_store_dwordx4 v[8:11], v1, {WS}, s15 offen sc1")
    A("s_mov_b64 exec, 0xff")
    A(f"buffer_store_dwordx4 v[8:11], v1, {WS}, s14 offen sc1")
    A("s_mov_b64 exec, -1")
    if o.preap & 1: apinit(0)
    A("s_barrier")
    if o.nohelp == 2: A("s_endpgm")
    A("s_getreg_b32 s19, hwreg(HW_REG_XCC_ID, 0, 4)")
    A("v_lshlrev_b32 v6, 7, v0")
    A("s_sub_u32 s7, s14, s15"); A("v_mov_b32 v7, s7"); A("v_cmp_eq_u32 vcc, 8, v0"); A("v_cndmask_b32 v6, v6, v7, vcc")
    A("s_waitcnt lgkmcnt(0)")
    mkW()
    A(f"s_xor_b32 {sW}, {sW}, s19"); A(f"s_mov_b32 s19, {sW}")
    for i in range(4): A(f"v_mov_b32 v{12+i}, {sW}")
    A("s_lshl_b32 s45, s59, 7"); A(f"s_add_u32 s45, s45, {FLB}")
    A("s_waitcnt vmcnt(0)")
    stamp(1)
    A("s_mov_b64 exec, 0xff")
    A(f"buffer_store_dwordx4 v[12:15], v1, {WS}, s45 offen sc1")
    if o.pre:
        A("s_mov_b64 exec, 0x1ff")
        A(f"buffer_load_dword v5, v6, {WS}, s15 offen sc1")
    A("s_mov_b64 exec, -1")
    if o.preap & 2: apinit(1)
    if o.nohelp == 3: A("s_endpgm")
    A("s_lshl_b32 s7, s4, 11"); A(f"s_add_u32 s7, s7, {FLB}")
    A(f"s_add_u32 s48, s40, s7"); A("s_addc_u32 s49, s41, 0")
    A("s_waitcnt vmcnt(0)")
    stamp(3)
    if o.hsl: A(f"s_sleep {o.hsl}")
    A("L_gc0:")
    for i in range(16): A(f"s_load_dword s{20+i}, s[48:49], {i*128} glc")
    A("s_waitcnt lgkmcnt(0)")
    for i in range(8): A(f"s_xor_b64 s[{20+2*i}:{21+2*i}], s[{20+2*i}:{21+2*i}], s[18:19]")
    for i in range(1, 8): A(f"s_or_b64 s[20:21], s[20:21], s[{20+2*i}:{21+2*i}]")
    A("s_or_b32 s20, s20, s21")
    A("s_cmp_gt_u32 s20, 15")
    retry("scc1", "L_gc0", sleep=4)
    A("s_cmp_eq_u32 s20, 0"); A("s_cselect_b32 s7, 1, 0")
    A(f"v_mov_b32 v1, {L_GO}"); A(f"v_mov_b32 v2, s7")
    A(f"ds_write_b32 v1, v2")
    stamp(2)
    if o.preap & 4:
        A(f"s_mov_b32 s14, {o.apthr}")
        wait_prog("s14", 20, sleep=8)
        apinit(1)
        A("s_waitcnt vmcnt(0)")
        A(f"ds_write_b32 v1, v2 offset:4")
    A("s_waitcnt lgkmcnt(0)")
    if stamps:
        A(f"v_mov_b32 v{vST}, 0")
        for i in range(4): A(f"v_writelane_b32 v{vST}, s{64+2*i}, {i}")
        A("s_branch L_stamps")
    A("s_endpgm")

    A("L_compute:")
    if o.ldonly == 1: A("s_barrier"); A("s_endpgm")
    A("s_cmp_eq_u32 s3, 9"); A("s_cbranch_scc1 L_helper")
    if o.cprio: A(f"s_setprio {o.cprio}")
    t = TT
    A("s_sub_u32 s6, s3, 1")
    for i in range(4): A(f"v_mov_b32 v{D+i}, -1")
    A(f"v_lshlrev_b32 v{aL16}, 4, v0")
    A("s_lshl_b32 s7, s6, 10"); A(f"s_add_u32 s7, s7, {EX}")
    A(f"v_add_u32 v{t+1}, s7, v{aL16}")
    for i in range(2): A(f"ds_write_b128 v{t+1}, {vr(D,4)} offset:{8192*i}")
    A("s_cmp_lt_u32 s6, 4"); A("s_cbranch_scc0 L_fill2")
    A(f"ds_write_b128 v{t+1}, {vr(D,4)} offset:16384")
    A("L_fill2:")
    n_, G_, q4, idx, oob = t+2, t+3, t+4, t+6, t+10
    A(f"v_and_b32 v{n_}, 15, v0"); A(f"v_lshrrev_b32 v{G_}, 4, v0"); A(f"v_and_b32 v{q4}, 7, v0")
    A(f"v_and_b32 v{idx}, 1, v{G_}"); A(f"v_lshlrev_b32 v{idx}, 1, v{idx}"); A(f"v_lshrrev_b32 v{t+7}, 5, v0"); A(f"v_add_u32 v{idx}, v{idx}, v{t+7}")
    A("s_lshl_b32 s7, s4, 4"); A("s_add_u32 s59, s7, s5")
    A(f"s_mul_i32 {sL}, s4, {GS}"); A(f"s_add_u32 {sL}, {sL}, {GRP0}")
    A("s_and_b32 s98, s6, 3")
    A("s_mul_i32 s99, s12, 9"); A("s_lshr_b32 s99, s99, 1"); A("s_add_u32 s99, s99, s6")
    A(f"v_and_b32 v{t+7}, 3, v0"); A(f"v_lshl_add_u32 v{t+7}, v{t+7}, 2, v{idx}")
    A("s_lshl_b32 s7, s99, 4"); A(f"v_add_u32 v{t+7}, s7, v{t+7}")
    A("s_mul_i32 s7, s12, 72"); A(f"v_subrev_u32 v{t+8}, s7, v{t+7}")
    A(f"v_mov_b32 v{t+9}, 72"); A(f"v_cmp_lt_u32 s[14:15], v{t+8}, v{t+9}")
    A(f"v_bfe_u32 v{t+5}, v0, 2, 1")
    A(f"v_mul_u32_u24 v{t+9}, 576, v{t+5}"); A(f"v_add_lshl_u32 v{t+9}, v{t+9}, v{t+7}, 1")
    A(f"v_mov_b32 v{oob}, {OOBV}")
    A(f"v_cndmask_b32 v{aOUT}, v{oob}, v{t+9}, s[14:15]")
    A("s_waitcnt lgkmcnt(0)")
    A("s_mov_b64 s[44:45], s[16:17]"); A("s_mov_b32 s46, 2304"); A("s_mov_b32 s47, 0x20000")
    A(f"s_load_dword {sW}, s[40:41], 0")
    A(f"buffer_load_ushort v{xold}, v{aOUT}, s[44:47], 0 offen")
    A("s_barrier")
    A("s_mov_b64 s[8:9], s[40:41]"); A("s_mov_b32 s10, 268435456"); A("s_mov_b32 s11, 0x20000")
    A("s_mov_b64 s[52:53], s[36:37]"); A("s_mov_b32 s54, 2304"); A("s_mov_b32 s55, 0x20000")
    A("s_cmp_lt_u32 s6, 4"); A("s_cbranch_scc0 L_const_done")
    A(f"s_mul_i32 s7, s6, {EXL}"); A(f"s_add_u32 s7, s7, {EX + X_XI}")
    A(f"v_add_u32 v{t+11}, s7, v{aL16}")
    A(f"v_mov_b32 v{t+12}, 0")
    ones = set(range(40, 48)) | {51}
    wr = set(range(52)) - set(range(8)) - {11} - set(range(20, 28)) - {31}
    msk = lambda S: sum(1 << i for i in S)
    A("s_mov_b32 exec_lo, 0"); A(f"s_mov_b32 exec_hi, {hex(msk(ones) >> 32)}")
    A(f"v_mov_b32 v{t+12}, 0x3f803f80")
    A(f"s_mov_b32 exec_lo, {hex(msk(wr) & 0xffffffff)}"); A(f"s_mov_b32 exec_hi, {hex(msk(wr) >> 32)}")
    for i in range(1, 4): A(f"v_mov_b32 v{t+12+i}, v{t+12}")
    A(f"ds_write_b128 v{t+11}, {vr(t+12,4)}")
    A("s_mov_b64 exec, -1")
    A("L_const_done:")
    u = t + 16
    A(f"s_lshr_b32 s7, s4, 1"); A(f"s_mul_i32 s7, s7, {CST}")
    A(f"s_lshl_b32 {sAPR[0]}, s99, 11"); A(f"s_add_u32 {sAPR[0]}, {sAPR[0]}, s7"); A(f"s_add_u32 {sAPR[0]}, {sAPR[0]}, {APB}")
    A(f"s_add_u32 {sAPR[1]}, {sAPR[0]}, {APL}")
    A("s_and_b32 s7, s6, 6"); A(f"s_mul_i32 s7, s7, {CST}"); A(f"s_add_u32 {sAPW[0]}, s7, {APB}"); A(f"s_add_u32 {sAPW[1]}, s7, {APB + APL}")
    A(f"v_add_u32 v{u}, 24, v{t+8}"); A(f"v_cmp_gt_u32 vcc, 64, v{t+8}"); A(f"v_cndmask_b32 v{u}, v{u}, v{t+8}, vcc")
    A(f"v_mul_u32_u24 v{u+1}, 320, v{t+5}"); A(f"v_lshl_add_u32 v{u}, v{u}, 1, v{u+1}"); A(f"v_add_u32 v{u}, {EX + X_XI}, v{u}")
    A(f"v_mov_b32 v{u+1}, {EX + X_TR}")
    A(f"v_cndmask_b32 v{aXW}, v{u+1}, v{u}, s[14:15]")
    n4, n3 = u + 4, u + 5
    A(f"v_lshrrev_b32 v{n4}, 2, v{n_}"); A(f"v_and_b32 v{n3}, 3, v{n_}")
    G1, G2 = u + 6, u + 7
    A(f"v_and_b32 v{G1}, 1, v{G_}"); A(f"v_lshrrev_b32 v{G2}, 1, v{G_}")
    A(f"v_and_b32 v{u}, 1, v{n4}"); A(f"v_mul_u32_u24 v{u+1}, 320, v{u}"); A(f"v_mov_b32 v{u+2}, 640")
    A(f"v_cmp_eq_u32 vcc, 0, v{n3}"); A(f"v_cndmask_b32 v{u+2}, v{u+2}, v{u+1}, vcc")
    A(f"v_lshl_add_u32 v{u+2}, v{G_}, 4, v{u+2}"); A(f"v_add_u32 v{aX}, {EX + X_XI}, v{u+2}")
    A(f"v_add_u32 v{u+2}, 640, v{u+1}")
    A(f"v_cmp_eq_u32 vcc, 1, v{n3}"); A(f"v_cndmask_b32 v{u+1}, v{u+1}, v{u+2}, vcc")
    A(f"v_lshl_add_u32 v{u+1}, v{G_}, 4, v{u+1}"); A(f"v_add_u32 v{aQR}, {EX + X_QI}, v{u+1}")
    A(f"v_and_b32 v{u}, 31, v0"); A(f"v_mul_u32_u24 v{u+1}, 320, v{G2}"); A(f"v_lshl_add_u32 v{u}, v{u}, 3, v{u+1}"); A(f"v_add_u32 v{aCK}, {EX}, v{u}")
    A(f"v_lshl_add_u32 v{u}, v{G_}, 3, v{n4}"); A(f"v_lshlrev_b32 v{u}, 8, v{u}")
    A(f"v_lshl_or_b32 v{u+1}, v{G1}, 2, v{n4}"); A(f"v_xor_b32 v{u+1}, s6, v{u+1}")
    A(f"v_lshl_add_u32 v{u}, v{u+1}, 5, v{u}"); A(f"v_lshl_add_u32 v{aWQ}, v{n3}, 3, v{u}")
    def q_layout(fl, n_, G_, tmp):
        u = tmp
        if fl:
            A("s_lshl_b32 s7, s13, 3"); A("s_add_u32 s7, s7, s6"); A("s_lshl_b32 s7, s7, 3"); A("s_add_u32 s7, s7, s12"); A("s_lshl_b32 s7, s7, 7")
        else:
            A("s_lshl_b32 s7, s13, 12"); A("s_lshr_b32 s14, s6, 1"); A("s_lshl_b32 s14, s14, 10"); A("s_add_u32 s7, s7, s14")
            A("s_lshl_b32 s14, s12, 7"); A("s_add_u32 s7, s7, s14"); A("s_and_b32 s14, s6, 1"); A("s_lshl_b32 s14, s14, 6"); A("s_add_u32 s7, s7, s14")
        A(f"v_lshl_add_u32 v{u}, v{G_}, 4, s7")
        A(f"v_lshrrev_b32 v{u+1}, 2, v{n_}"); A(f"v_lshl_add_u32 v{u}, v{u+1}, {6 if fl else 13}, v{u}")
        A(f"v_and_b32 v{u+1}, 3, v{n_}"); A(f"v_lshl_add_u32 v{u}, v{u+1}, 14, v{u}")
        A(f"v_mov_b32 v{aQS}, {OOBV}")
        A(f"s_mov_b32 exec_lo, {hex(0x00330033 if fl else 0x00130013)}"); A("s_mov_b32 exec_hi, exec_lo")
        A(f"v_mov_b32 v{aQS}, v{u}")
        A("s_mov_b64 exec, -1")
        if fl:
            A(f"s_lshl_b32 s7, s6, 11"); A(f"s_add_u32 {sQL}, {sL}, s7"); A("s_lshl_b32 s7, s13, 6"); A(f"s_add_u32 {sQL}, {sQL}, s7"); A(f"s_add_u32 {sCS}, {sQL}, {G_CS}")
            A(f"v_lshrrev_b32 v{u}, 3, v0"); A(f"v_lshlrev_b32 v{u}, 7, v{u}"); A(f"v_lshl_add_u32 v{u}, v{u+1}, 4, v{u}")
            A(f"v_bfe_u32 v{u+1}, v0, 2, 1"); A(f"v_lshl_add_u32 v{aQL}, v{u+1}, 10, v{u}")
        else:
            A(f"s_lshl_b32 s7, s6, 10"); A(f"s_add_u32 {sCS}, {sL}, s7"); A("s_lshl_b32 s7, s13, 13"); A(f"s_add_u32 {sQL}, {sCS}, s7"); A(f"s_add_u32 {sCS}, {sCS}, {G_CS}")
            A(f"v_mov_b32 v{aQL}, v{aL16}")
    q_layout(o.qfl, n_, G_, u)
    A("s_lshl_b32 s7, s13, 6")
    A(f"s_mov_b32 {sSM}, 0x70"); A(f"s_mov_b64 {sSX}, 0xf0000f")
    A(f"s_add_u32 s7, s7, {G_ST}")
    A(f"v_lshl_add_u32 v{aSTL}, v{q4}, 7, s7")
    A(f"s_lshl_b32 s7, s12, 7"); A(f"s_add_u32 s7, s7, {sL}"); A(f"s_add_u32 {sST}, s7, {G_ST}")
    A("s_lshr_b32 s100, s6, 2")
    A("s_mul_i32 s7, s100, 320"); A("s_lshl_b32 s101, s98, 6"); A("s_add_u32 s7, s7, s101"); A(f"s_add_u32 s7, s7, {EX + X_QI}")
    A(f"v_lshl_add_u32 v{u}, v{q4}, 2, v{idx}"); A(f"v_lshl_add_u32 v{aQW}, v{u}, 1, s7")
    A("s_lshl_b32 s7, s6, 5"); A(f"s_add_u32 s7, s7, {EX + X_PI}")
    A(f"v_mul_u32_u24 v{u}, 320, v{G1}"); A(f"v_lshl_add_u32 v{u}, v{n_}, 1, v{u}"); A(f"v_add_u32 v{aPW}, s7, v{u}")
    A("s_lshl_b32 s7, s6, 2"); A(f"s_add_u32 s7, s7, {EX + X_MI}")
    A(f"v_lshl_add_u32 v{aMW}, v{G1}, 5, s7")
    A(f"v_lshrrev_b32 v{u}, 3, v{n_}"); A(f"v_mul_u32_u24 v{u}, 320, v{u}"); A(f"v_lshl_add_u32 v{u}, v{q4}, 5, v{u}")
    A(f"v_lshl_add_u32 v{u}, v{G1}, 4, v{u}"); A(f"v_add_u32 v{u}, {EX + X_PI}, v{u}")
    A(f"v_mov_b32 v{u+1}, {EX + X_XI + 128}")
    A(f"v_xor_b32 v{u+2}, v{q4}, v{G2}")
    for s in range(4):
        A(f"v_cmp_eq_u32 vcc, {2*s}, v{u+2}"); A(f"v_cndmask_b32 v{aPR+s}, v{u+1}, v{u}, vcc")
    A(f"v_lshl_add_u32 v{u}, v{G1}, 2, v{n_}"); A(f"v_and_b32 v{u}, 7, v{u}"); A(f"v_lshl_add_u32 v{u}, v{G2}, 3, v{u}")
    A(f"v_lshlrev_b32 v{u+1}, 2, v{u}"); A(f"v_add_u32 v{aMR}, {EX + X_MI}, v{u+1}")
    A("s_lshl_b32 s7, s100, 3"); A(f"s_add_u32 s7, s7, {G_ML}"); A(f"v_lshl_add_u32 v{aML}, v{u}, 4, s7")
    A(f"v_cmp_eq_u32 s[14:15], 0, v{G1}")
    A("s_lshl_b32 s7, s6, 9"); A("s_lshl_b32 s101, s5, 4"); A("s_add_u32 s7, s7, s101"); A(f"s_add_u32 s7, s7, {G_OP}")
    A(f"v_lshlrev_b32 v{u}, 12, v{G2}"); A(f"v_lshrrev_b32 v{u+1}, 3, v{n_}"); A(f"v_lshl_add_u32 v{u}, v{u+1}, 8, v{u}")
    A(f"v_lshl_add_u32 v{u}, v{q4}, 1, v{u}"); A(f"v_add_u32 v{u}, s7, v{u}")
    A(f"v_cndmask_b32 v{aOS}, v{oob}, v{u}, s[14:15]")
    A(f"s_lshr_b32 s15, {sNW}, 5")
    A("s_lshl_b32 s7, s5, 1"); A("s_cmp_eq_u32 s5, 15"); A("s_cselect_b32 s7, 32, s7")
    A("s_and_b32 s14, s6, 1"); A("s_lshl_b32 s14, s14, s15"); A("s_add_u32 s7, s7, s14")
    A("s_lshl_b32 s7, s7, 4"); A("s_add_u32 s7, s7, s4"); A("s_lshl_b32 s7, s7, 7")
    A("s_movk_i32 s14, 2048"); A("s_cmp_eq_u32 s15, 0"); A(f"s_cselect_b32 s14, {CST}, s14")
    A(f"v_and_b32 v{u}, 31, v0"); A(f"v_lshl_add_u32 v{u}, v{u}, 2, s7"); A(f"v_mad_u32_u24 v{aAS}, s14, v{G2}, v{u}")
    A(f"s_mov_b32 {sPass}, 0"); A(f"s_mov_b32 {sFast}, {1 if o.l0f else 0}")
    A(f"s_add_u32 {sO[1]}, {sL}, {OPB}")
    A("s_andn2_b32 s7, s6, s15")
    A(f"s_lshl_b32 s7, s7, 10"); A(f"s_add_u32 s7, s7, {sL}"); A(f"s_add_u32 {sOL[0]}, s7, {G_OP}"); A(f"s_add_u32 {sOL[1]}, s7, {G_OP + OPB}")
    A("s_and_b32 s14, s6, 1"); A("s_lshl_b32 s14, s14, 10"); A(f"s_add_u32 {sRED}, s14, {EX + X_RED}")
    A("s_lshr_b32 s7, s6, s15")
    A(f"v_lshrrev_b32 v{u}, 3, v0"); A(f"v_add_u32 v{u}, s7, v{u}"); A(f"v_and_b32 v{u}, 3, v{u}"); A(f"v_lshlrev_b32 v{u}, 2, v{u}")
    A(f"v_lshl_add_u32 v{u}, v{n_}, 4, v{u}"); A(f"v_lshl_add_u32 v{u}, v{G2}, 8, v{u}")
    A("s_sub_u32 s7, 10, s15"); A(f"v_lshl_add_u32 v{u}, v{G1}, s7, v{u}")
    A("s_lshl_b32 s7, s100, 9"); A("s_cmp_eq_u32 s15, 0"); A("s_cselect_b32 s7, s7, s14"); A(f"s_add_u32 s7, s7, {EX + X_RED}"); A(f"v_add_u32 v{aRW}, s7, v{u}")
    A("s_mov_b32 s98, 1"); A("s_mov_b32 s99, 1")
    A("s_mov_b32 s100, 0x3ae38e39")
    A("s_mov_b32 s101, 0x3e0293ee")
    if stamps:
        A(f"v_mov_b32 v{vST}, 0"); A(f"v_mov_b32 v{vCN}, 0")
        for c in CNT: A(f"s_mov_b32 {c}, 0")
    A(f"v_mov_b32 v{u+1}, 12"); A(f"v_cmp_eq_u32 vcc, 0, v{n3}"); A(f"v_cndmask_b32 v{u+1}, v{u+1}, v{n4}, vcc")
    A(f"v_lshl_or_b32 v{u}, v{G_}, 8, v{n3}"); A(f"v_lshl_or_b32 v{vSel}, v{u+1}, 16, v{u}")
    A("s_waitcnt lgkmcnt(0)")
    mkW()
    A(f"v_perm_b32 v{vTag}, {sW}, {sW}, v{vSel}")
    A("s_waitcnt vmcnt(0)")
    A("s_cmp_lt_u32 s6, 5"); A("s_cbranch_scc0 L_nox0")
    A(f"ds_write_b16 v{aXW}, v{xold}")
    A("L_nox0:")
    A(f"v_lshlrev_b32 v{xold}, 16, v{xold}")
    stamp(1)
    WQT = TT + 16
    CK = TT + 28
    def wq_reads(tau):
        for s in range(3):
            for h in range(2):
                off = tau * 18432 + (s * 8192 if s < 2 else 10240) + h * 1024
                A(f"ds_read_b64_tr_b16 {vr(WQT + 4*s + 2*h, 2)}, v{aWQ} offset:{off}")
    if o.ldonly == 2: A("s_endpgm")
    if o.ldonly == 4:
        fl = {0: "", 1: " sc1", 2: " nt", 3: " sc0 sc1"}[o.pfl]
        for rnd in range(3):
            A(f"s_mov_b32 s14, {o.bthr + 30 * rnd}")
            wait_prog("s14", M)
            stamp(2 + 3 * rnd)
            if o.pst: A(f"buffer_store_dwordx4 {vr(D,4)}, v{aQS}, {WS}, {sL} offen" + (" sc1" if o.pst == 2 else ""))
            if o.pn > 0: A(f"buffer_load_dwordx4 {vr(t,4)}, v{aQL}, {WS}, {sQL} offen{fl}")
            if o.pn > 1: A(f"buffer_load_dwordx4 {vr(t+8,4)}, v{aQL}, {WS}, {sCS} offen{fl}")
            if o.pn > 2: A(f"buffer_load_dwordx3 {vr(t+4,3)}, v{aSTL}, {WS}, {sL} offen{fl}")
            stamp(3 + 3 * rnd)
            A("s_waitcnt vmcnt(0)")
            stamp(4 + 3 * rnd)
        A("s_waitcnt lgkmcnt(0)")
        for i in range(16): A(f"v_writelane_b32 v{vST}, s{64+2*i}, {i}")
        A("s_branch L_stamps")
    A("s_mov_b32 s14, 18")
    wait_prog("s14", M)
    wq_reads(0)
    stamp(2)
    A("s_branch L_P2_0")

    def lds_check(name, off, nreads, reads):
        A(f"{name}:")
        A(f"ds_read_b64 {vr(CK,2)}, v{aCK} offset:{off}")
        reads()
        A(f"s_waitcnt lgkmcnt({0 if stamps else nreads})")
        A(f"v_dot2_f32_bf16 v{CK}, v{CK}, v{CK+1}, 0")
        A(f"v_cmp_u_f32 vcc, v{CK}, v{CK}")
        s = lab("ck")
        A(f"s_cbranch_vccnz {s}")
        cold.append(f"{s}:")
        cold.append(f"ds_read_b64 {vr(CK,2)}, v{aCK} offset:{off}")
        cold.append(f"s_sub_u32 {sBud}, {sBud}, 1")
        cold.append(f"s_cbranch_scc1 L_end")
        cold.append("s_waitcnt lgkmcnt(0)")
        cold.append(f"v_dot2_f32_bf16 v{CK}, v{CK}, v{CK+1}, 0")
        cold.append(f"v_cmp_u_f32 vcc, v{CK}, v{CK}")
        cold.append(f"s_cbranch_vccnz {s}")
        cold.append(f"s_branch {name}")
    def p1_core(t, rlabel, sleep, sleep0):
        A("s_waitcnt vmcnt(0)")
        A(f"v_bitop3_b32 v{t+8}, v{t}, v{t+4}, v{vTag} bitop3:0x7e")
        A(f"v_and_b32 v{t}, 0xffffff00, v{t}")
        A(f"v_and_b32 v{t+4}, 0xffffff00, v{t+4}")
        A(f"v_pk_add_f32 {vr(t+2,2)}, {vr(t+2,2)}, {vr(t+6,2)}")
        A(f"v_pk_add_f32 {vr(t,2)}, {vr(t,2)}, {vr(t+4,2)}")
        A(f"v_cmp_ne_u32_sdwa vcc, v{t+8}, 0 src0_sel:BYTE_0 src1_sel:DWORD")
        red8(t, lambda: retry("vccnz", rlabel, sleep=sleep, sleep0=sleep0))
        A(f"v_add_f32 v{xold}, v{t}, v{xold}")
        A(f"v_cvt_pk_bf16_f32 v{t+1}, v{xold}, v{xold}")
    def p1_loads(t, dst, k):
        dst.append(f"buffer_load_dwordx4 {vr(t,4)}, v{aL16}, {WS}, {sAPR[k]} offen sc1")
        dst.append(f"buffer_load_dwordx4 {vr(t+4,4)}, v{aL16}, {WS}, {sAPR[k]} offen offset:1024 sc1")

    for tau in range(2):
        E = tau * EXL
        sb = 2 + 7 * tau
        K, V = KR[tau], VR[tau]
        A(f"L_P1_{tau}:")
        sk = lab("sk")
        A("s_cmp_lt_u32 s6, 5"); A(f"s_cbranch_scc0 {sk}")
        if o.gate: ackwait(3 * tau, o.asl)
        if o.gsl: A(f"s_sleep {o.gsl}")
        p1_loads(t, L, 1 - tau)
        A(f"{sk}:")
        nextW()
        if tau == 1:
            sk = lab("sk")
            A(f"s_cmp_eq_u32 {sPass}, 0"); A(f"s_cbranch_scc0 {sk}")
            A(f"s_add_u32 s14, {sNW}, 100")
            wait_prog("s14", M)
            A(f"{sk}:")
        wq_reads(tau)
        A("s_cmp_lt_u32 s6, 5"); A(f"s_cbranch_scc0 L_P1i_{tau}")
        cold.append(f"L_P1i_{tau}:")
        cold.append("s_waitcnt vmcnt(0)")
        if o.idle: cold.append(f"s_sleep {o.idle}")
        cold.append(f"s_branch L_P1e_{tau}")
        A(f"L_P1w_{tau}:")
        p1_core(t, f"L_P1r_{tau}", o.sl1, o.sl1p)
        A(f"ds_write_b16 v{aXW}, v{t+1} offset:{E}")
        cold.append(f"L_P1r_{tau}:"); cnt(cold, 3 * tau)
        p1_loads(t, cold, 1 - tau)
        cold.append(f"s_branch L_P1w_{tau}")
        A(f"L_P1e_{tau}:")
        A(f"v_perm_b32 v{vTag}, {sW}, {sW}, v{vSel}")
        stamp(sb)
        def rd():
            for s in range(3): A(f"ds_read_b128 {vr(t+4*s,4)}, v{aX} offset:{E + 64*s}")
        lds_check(f"L_P2_{tau}", E + X_XI, 3, rd)
        for s in range(3):
            A(f"s_waitcnt lgkmcnt({0 if stamps else 2-s})")
            A(f"v_mfma_f32_16x16x32_bf16 {vr(D,4)}, {vr(WQT+4*s,4)}, {vr(t+4*s,4)}, {0 if s == 0 else vr(D,4)}")
        fastcmp()
        A(f"v_mov_b32_sdwa v{D}, v{vTag} dst_sel:BYTE_0 dst_unused:UNUSED_PRESERVE src0_sel:BYTE_1")
        gstore(f"buffer_store_dwordx4 {vr(D,4)}, v{aQS}, {WS}, {sL} offen")
        sk = lab("sk")
        A("s_add_u32 s7, s6, s13"); A("s_cmp_eq_u32 s7, 0"); A(f"s_cbranch_scc0 {sk}")
        for s in range(3):
            A(f"v_mfma_f32_16x16x32_bf16 {vr(t+12,4)}, {vr(t+4*s,4)}, {vr(t+4*s,4)}, {0 if s == 0 else vr(t+12,4)}")
        A(f"v_and_b32 v{M}, {sSM}, v{aL16}")
        A(f"s_mov_b64 exec, {sSX}")
        fastcmp()
        A(f"v_mov_b32 v{t+14}, {sW}")
        gstore(f"buffer_store_dwordx4 {vr(t+12,4)}, v{M}, {WS}, {sST} offen")
        A("s_mov_b64 exec, -1")
        A(f"{sk}:")
        stamp(sb + 1)
        if o.ldonly == 3: A("s_endpgm")
        if o.w3: ackwait(3 * tau + 1, o.bsl)
        def p3_loads(dst, cs):
            dst.append(f"buffer_load_dwordx4 {vr(t,4)}, v{aQL}, {WS}, {sQL} offen sc1")
            dst.append(f"buffer_load_dwordx3 {vr(t+4,3)}, v{aSTL}, {WS}, {sL} offen sc1")
            if cs: dst.append(f"buffer_load_dwordx4 {vr(t+8,4)}, v{aQL}, {WS}, {sCS} offen sc1")
        if tau == 0 and o.bthr:
            sk = lab("sk")
            A(f"s_cmp_eq_u32 {sPass}, 0"); A(f"s_cbranch_scc0 {sk}")
            A(f"s_mov_b32 s14, {o.bthr}")
            wait_prog("s14", M)
            A(f"{sk}:")
        p3_loads(L, False)
        A(f"s_cmp_eq_u32 {sPass}, 0"); A(f"s_cbranch_scc0 L_P3w_{tau}")
        A(f"buffer_load_dwordx4 {vr(t+8,4)}, v{aQL}, {WS}, {sCS} offen sc1")
        A(f"s_lshl_b32 s14, s6, 2"); A(f"s_add_u32 s14, s14, {22 if tau == 0 else 104}")
        if tau: A(f"s_add_u32 s14, s14, {sNW}")
        wait_prog("s14", M)
        k = t + 12
        A(f"v_and_b32 v{k}, 15, v0"); A(f"v_lshrrev_b32 v{k+1}, 4, v0"); A(f"v_xor_b32 v{k+1}, v{k+1}, v{k}")
        A(f"v_lshlrev_b32 v{k}, 8, v{k}"); A(f"v_lshl_add_u32 v{k}, v{k+1}, 4, v{k}")
        A(f"s_lshl_b32 s7, s6, 12"); A(f"s_add_u32 s7, s7, {L_K}"); A(f"v_add_u32 v{k}, s7, v{k}")
        for s in range(1, 4): A(f"v_xor_b32 v{k+s}, {64*s}, v{k}")
        for s in range(4): A(f"ds_read_b128 {vr(K+4*s,4)}, v{k+s}")
        A("s_waitcnt lgkmcnt(0)")
        if tau == 0: consumed(1, M)
        A(f"L_P3c_{tau}:")
        A("s_waitcnt vmcnt(0)")
        A(f"v_cmp_ne_u32_sdwa vcc, v{t+8}, v{vTag} src0_sel:BYTE_0 src1_sel:BYTE_0")
        A(f"v_and_b32 v{t+8}, 0xffffff00, v{t+8}")
        red8(t + 8, lambda: retry("vccnz", f"L_P3rc_{tau}", sleep=o.sl3p))
        cold.append(f"L_P3rc_{tau}:"); cnt(cold, 3 * tau + 1); p3_loads(cold, True); cold.append(f"s_branch L_P3c_{tau}")
        A(f"v_cvt_pk_bf16_f32 v{t+9}, v{t+8}, v{t+8}")
        A(f"ds_write_b16 v{aQW}, v{t+9} offset:{E + 640}")
        A(f"ds_write_b16 v{aQW}, v{t+9} offset:{E + 640 + 2*EXL}")
        A(f"L_P3w_{tau}:")
        A("s_waitcnt vmcnt(0)")
        A(f"v_cmp_ne_u32_sdwa vcc, v{t}, v{vTag} src0_sel:BYTE_0 src1_sel:BYTE_0")
        A(f"v_and_b32 v{t}, 0xffffff00, v{t}")
        red8(t, lambda: retry("vccnz", f"L_P3r_{tau}", sleep=o.sl3, sleep0=o.sl3p))
        cold.append(f"L_P3r_{tau}:"); cnt(cold, 3 * tau + 1); p3_loads(cold, False); cold.append(f"s_branch L_P3w_{tau}")
        A(f"v_cvt_pk_bf16_f32 v{t+1}, v{t}, v{t}")
        A(f"ds_write_b16 v{aQW}, v{t+1} offset:{E}")
        A(f"v_cmp_ne_u32 vcc, {sW}, v{t+6}")
        for i, oc in enumerate(OCT):
            A(f"v_add_f32_dpp v{t+4}, v{t+4}, v{t+4} {oc} {DPPM}")
            A(f"v_add_f32_dpp v{t+5}, v{t+5}, v{t+5} {oc} {DPPM}")
            if i == 0: retry("vccnz", f"L_P3r_{tau}", sleep=o.sl3, sleep0=o.sl3p)
        al, be = M + 2, M + 3
        A(f"v_mul_f32 v{M+1}, s100, v{t+5}")
        A(f"v_mul_f32 v{t+6}, v{M+1}, v{M+1}")
        A(f"v_fma_f32 v{M}, v{t+4}, s100, -v{t+6}")
        stamp(sb + 2)
        def rd():
            for s in range(4): A(f"ds_read_b128 {vr(t+4*s,4)}, v{aQR} offset:{E + 64*s}")
        lds_check(f"L_P4_{tau}", E + X_QI, 4, rd)
        fill = [[f"v_max_f32 v{M}, 0, v{M}", f"v_add_f32 v{M}, 0x3727c5ac, v{M}"], [f"v_rsq_f32 v{M}, v{M}"],
                [f"v_mul_f32 v{al}, s101, v{M}", f"v_mul_f32 v{be}, -v{M+1}, v{al}"], []]
        for s in range(4):
            A(f"s_waitcnt lgkmcnt({0 if stamps else 3-s})")
            A(f"v_mfma_f32_16x16x32_bf16 {vr(D,4)}, {vr(t+4*s,4)}, {vr(K+4*s,4)}, {0 if s == 0 else vr(D,4)}")
            for f in fill[s]: A(f)
        x = t + 16
        A(f"v_mul_f32 v{x}, v{be}, v{D+1}")
        A(f"v_fmac_f32 v{x}, v{al}, v{D}")
        A(f"v_max_f32_dpp v{x+1}, v{x}, v{x} {OCT[0]} {DPPM}")
        A(f"v_max_f32_dpp v{x+1}, v{x+1}, v{x+1} {OCT[1]} {DPPM}")
        A(f"v_max_f32_dpp v{x+1}, v{x+1}, v{x+1} {OCT[2]} {DPPM}")
        A(f"v_max_f32_dpp v{x+1}, v{x+1}, v{x+1} row_ror:8 {DPPM}")
        A(f"v_sub_f32 v{x+2}, v{x}, v{x+1}")
        A(f"v_exp_f32 v{x+2}, v{x+2}")
        A(f"ds_write_b32 v{aMW}, v{x+1} offset:{E}")
        A(f"v_cvt_pk_bf16_f32 v{x+3}, v{x+2}, v{x+2}")
        A(f"ds_write_b16 v{aPW}, v{x+3} offset:{E}")
        for oc in OCT + ["row_ror:8"]:
            A(f"v_add_f32_dpp v{x+2}, v{x+2}, v{x+2} {oc} {DPPM}")
        A(f"ds_write_b32 v{aMW}, v{x+2} offset:{E + 64}")
        stamp(sb + 3)
        sk = lab("sk")
        A(f"s_cmp_eq_u32 {sPass}, 0"); A(f"s_cbranch_scc0 {sk}")
        if tau == 0: A("s_mov_b32 s14, 82")
        else: A(f"s_add_u32 s14, {sNW}, 164")
        wait_prog("s14", M)
        A(f"v_add_u32 v{M}, {L_V}, v{aWQ}")
        for s in range(4):
            for h in range(2):
                A(f"ds_read_b64_tr_b16 {vr(V + 4*s + 2*h, 2)}, v{M} offset:{s*8192 + h*1024}")
        A("s_waitcnt lgkmcnt(0)")
        if tau == 0:
            consumed(2, M)
            A(f"s_mov_b32 {sSM}, 0x100"); A(f"s_mov_b64 {sSX}, 0x100001")
            A(f"s_lshl_b32 s7, s12, 4"); A(f"s_add_u32 s7, s7, {sL}"); A(f"s_add_u32 {sST}, s7, {G_S2}")
            A(f"s_lshl_b32 s7, s13, 8"); A(f"s_add_u32 s7, s7, {G_S2}")
            A(f"v_and_b32 v{aSTL}, 0x70, v{aL16}"); A(f"v_add_u32 v{aSTL}, s7, v{aSTL}")
            if o.qfl:
                A(f"v_and_b32 v{t}, 15, v0"); A(f"v_lshrrev_b32 v{t+1}, 4, v0")
                q_layout(0, t, t + 1, t + 2)
            A(f"v_mov_b32 v{M}, {L_GO}")
            A("L_gow:")
            A(f"ds_read_b32 v{M+1}, v{M}")
            A("s_waitcnt lgkmcnt(0)")
            A(f"v_readfirstlane_b32 {sFast}, v{M+1}")
            A(f"s_cmp_lt_i32 {sFast}, 0")
            retry("scc1", "L_gow", sleep=2)
        if tau == 1 and (o.preap & 4):
            A(f"v_mov_b32 v{M}, {L_GO}")
            A("L_gow2:")
            A(f"ds_read_b32 v{M+1}, v{M} offset:4")
            A("s_waitcnt lgkmcnt(0)")
            A(f"v_cmp_gt_i32 vcc, 0, v{M+1}")
            retry("vccnz", "L_gow2", sleep=2)
        A(f"{sk}:")
        def rd():
            A(f"ds_read_b32 v{x}, v{aMR} offset:{E}")
            for s in range(4): A(f"ds_read_b128 {vr(t+4*s,4)}, v{aPR+s} offset:{E}")
        lds_check(f"L_P5_{tau}", E + X_PI, 5, rd)
        fill = [f"v_max_f32_dpp v{x+1}, v{x}, v{x} {OCT[0]} {DPPM}",
                f"v_max_f32_dpp v{x+1}, v{x+1}, v{x+1} {OCT[1]} {DPPM}",
                f"v_max_f32_dpp v{x+1}, v{x+1}, v{x+1} {OCT[2]} {DPPM}",
                f"v_sub_f32 v{x+2}, v{x}, v{x+1}"]
        for s in range(4):
            A(f"s_waitcnt lgkmcnt({0 if stamps else 3-s})")
            A(f"v_mfma_f32_16x16x32_bf16 {vr(D,4)}, {vr(t+4*s,4)}, {vr(V+4*s,4)}, {0 if s == 0 else vr(D,4)}")
            A(fill[s])
        A(f"v_exp_f32 v{x+2}, v{x+2}")
        A(f"ds_read_b32 v{x+5}, v{aMR} offset:{E + 64}")
        fastcmp()
        A(f"v_mul_f32_dpp v{x+3}, v{x+2}, v{D} row_newbcast:0 {DPPM}")
        A(f"v_mul_f32_dpp v{x+4}, v{x+2}, v{D+1} row_newbcast:1 {DPPM}")
        A(f"v_fmac_f32_dpp v{x+3}, v{x+2}, v{D+2} row_newbcast:2 {DPPM}")
        A(f"v_fmac_f32_dpp v{x+4}, v{x+2}, v{D+3} row_newbcast:3 {DPPM}")
        A(f"v_add_f32 v{x+6}, v{x+3}, v{x+4}")
        A(f"v_add_f32 v{x+3}, v{x+3}, v{x+4}")
        A(f"v_permlane16_swap_b32 v{x+3}, v{x+6}")
        A(f"v_add_f32 v{x+3}, v{x+3}, v{x+6}")
        A(f"v_cvt_pk_bf16_f32 v{x+4}, v{x+3}, v{x+3}")
        gstore(f"buffer_store_short v{x+4}, v{aOS}, {WS}, {sO[tau]} offen")
        sk, l = lab("sk"), lab("ml")
        A("s_cmp_eq_u32 s6, 0"); A(f"s_cbranch_scc0 {sk}")
        A("s_lshl_b32 s7, s5, 4"); A(f"s_add_u32 s7, s7, {G_ML}"); A(f"v_lshrrev_b32 v{M}, 2, v0"); A(f"v_add_u32 v{M}, s7, v{M}")
        A(f"v_mov_b32 v{x+6}, v{x+1}")
        A(f"{l}:")
        A("s_waitcnt lgkmcnt(0)")
        A(f"v_mul_f32 v{x+7}, v{x+5}, v{x+2}")
        for oc in OCT: A(f"v_add_f32_dpp v{x+7}, v{x+7}, v{x+7} {oc} {DPPM}")
        A("s_mov_b64 exec, s[98:99]")
        fastcmp()
        gstore(f"buffer_store_dwordx2 {vr(x+6,2)}, v{M}, {WS}, {sO[tau]} offen")
        A("s_mov_b64 exec, -1")
        A(f"v_cmp_u_f32 vcc, v{x+7}, v{x+7}")
        r = lab("mlr")
        retry("vccnz", r)
        cold.append(f"{r}:"); cold.append(f"ds_read_b32 v{x+5}, v{aMR} offset:{E + 64}"); cold.append(f"s_branch {l}")
        A(f"v_mov_b32 v{x+8}, -1"); A(f"v_mov_b32 v{x+9}, -1")
        A("s_mov_b64 exec, s[98:99]")
        fastcmp()
        gstore(f"buffer_store_dwordx2 {vr(x+8,2)}, v{M}, {WS}, {sO[1-tau]} offen")
        A("s_mov_b64 exec, -1")
        A(f"{sk}:")
        stamp(sb + 4)
        Wo = WO + 16 * tau
        aRR, RD, DD, ee, ls = t + 20, t + 24, t + 8, t + 22, t + 23
        A(f"v_mov_b32 v{x+8}, -1")
        fastcmp()
        gstore(f"buffer_store_short v{x+8}, v{aOS}, {WS}, {sO[1-tau]} offen")
        A(f"v_add_u32 v{aRR}, {sRED}, v{aL16}")
        A(f"s_cmp_eq_u32 {sNW}, 32"); A(f"s_cbranch_scc1 L_P6s_{tau}_4")
        for nt in (2, 4):
            main = L if nt == 2 else []
            B = main.append
            stubs = []
            def p6_loads(dst):
                dst.append(f"buffer_load_dwordx2 {vr(ML,2)}, v{aML}, {WS}, {sO[tau]} offen sc1")
                dst.append(f"buffer_load_dwordx4 {vr(t,4)}, v{aL16}, {WS}, {sOL[tau]} offen sc1")
                if nt == 4: dst.append(f"buffer_load_dwordx4 {vr(t+4,4)}, v{aL16}, {WS}, {sOL[tau]} offen offset:1024 sc1")
            def rty(dst, cond, target, sleep=0):
                s_ = lab("rt")
                dst.append(f"s_cbranch_{cond} {s_}")
                stubs.append(f"{s_}:")
                if sleep: stubs.append(f"s_sleep {sleep}")
                stubs.extend([f"s_sub_u32 {sBud}, {sBud}, 1", f"s_cbranch_scc0 {target}", "s_endpgm"])
            def nanchk(dst):
                dst.append(f"v_add_f32 v{M+2}, v{ML}, v{ML+1}")
                for i in range(nt): dst.append(f"v_dot2_f32_bf16 v{M+2}, v{t+2*i}, v{t+2*i+1}, v{M+2}")
                dst.append(f"v_cmp_u_f32 vcc, v{M+2}, v{M+2}")
            sfx = f"{tau}_{nt}"
            B(f"L_P6s_{sfx}:")
            B(f"s_cmp_eq_u32 {sPass}, 0"); B(f"s_cbranch_scc1 L_P6z_{sfx}")
            B("s_waitcnt lgkmcnt(0)" + (" vmcnt(0)" if o.w6 else ""))
            B(f"L_P6_{sfx}:")
            p6_loads(main)
            if stamps: B(f"s_memrealtime s[{64+2*(sb+5)}:{65+2*(sb+5)}]")
            z = []; Z = z.append
            Z(f"L_P6z_{sfx}:")
            fr = (o.fr >> tau) & 1
            Z("s_or_b32 s14, s6, s15"); Z("s_add_u32 s14, s14, 1"); Z(f"s_lshl_b32 s14, s14, {nt//2}")
            Z(f"s_add_u32 s14, s14, {82 if tau == 0 else 164 + 8*nt}")
            Z(f"v_mov_b32 v{M}, {L_PROG}")
            if fr:
                Z(f"v_mov_b32 v{ML}, -1")
                for i in range(2 * nt): Z(f"v_mov_b32 v{t+i}, -1")
                Z(f"v_mov_b32 v{ML+1}, -1")
                if o.csl and tau == 0: Z(f"s_sleep {o.csl}")
                Z(f"L_P6a_{sfx}:")
                nanchk(z)
                Z(f"s_cbranch_vccz L_P6b_{sfx}")
                cnt(z, 3 * tau + 2)
                p6_loads(z)
                Z(f"L_P6b_{sfx}:")
                for i in range(o.frd):
                    Z(f"ds_read_b32 v{M+1}, v{M}"); Z("s_waitcnt lgkmcnt(0)"); Z(f"v_cmp_gt_i32 vcc, s14, v{M+1}")
                    if i < o.frd - 1: Z(f"s_cbranch_vccz L_P6c_{sfx}")
                rty(z, "vccnz", f"L_P6a_{sfx}")
            else:
                Z("s_waitcnt lgkmcnt(0)" + (" vmcnt(0)" if (o.wp >> (3 * tau + 2)) & 1 else ""))
                if o.csl and tau == 0: Z(f"s_sleep {o.csl}")
                p6_loads(z)
                Z(f"L_P6b_{sfx}:")
                Z(f"ds_read_b32 v{M+1}, v{M}"); Z("s_waitcnt lgkmcnt(0)"); Z(f"v_cmp_gt_i32 vcc, s14, v{M+1}")
                rty(z, "vccnz", f"L_P6b_{sfx}", sleep=1)
            Z(f"L_P6c_{sfx}:")
            k = t + 8
            Z(f"v_lshrrev_b32 v{k}, 4, v0"); Z(f"v_bfe_u32 v{k+1}, v0, 2, 2"); Z(f"v_lshl_add_u32 v{k+1}, v{k}, 3, v{k+1}")
            Z(f"v_and_b32 v{k}, 1, v{k}")
            if nt == 2:
                Z("s_lshl_b32 s7, s6, 11"); Z(f"s_add_u32 s7, s7, {L_WO}")
                Z(f"v_and_b32 v{k+2}, 3, v0"); Z(f"v_lshl_add_u32 v{k+2}, v{k+2}, 3, s7")
                Z(f"v_lshl_add_u32 v{k+2}, v{k}, 5, v{k+2}"); Z(f"v_lshl_add_u32 v{k+2}, v{k+1}, 6, v{k+2}")
                Z(f"v_xor_b32 v{k+3}, 32, v{k+2}")
                for T_ in range(2):
                    for h in range(2): Z(f"ds_read_b64_tr_b16 {vr(Wo + 4*T_ + 2*h, 2)}, v{k+2+T_} offset:{h*256}")
            else:
                Z("s_lshr_b32 s7, s6, 1"); Z("s_lshl_b32 s7, s7, 13"); Z(f"s_add_u32 s7, s7, {L_WO}")
                Z(f"v_and_b32 v{k+2}, 3, v0"); Z(f"v_lshl_add_u32 v{k+2}, v{k+2}, 3, s7")
                Z(f"v_bfe_u32 v{k+3}, v0, 3, 1"); Z(f"v_lshl_or_b32 v{k}, v{k}, 1, v{k+3}")
                Z("s_and_b32 s7, s6, 1"); Z("s_lshl_b32 s7, s7, 1"); Z(f"v_xor_b32 v{k}, s7, v{k}")
                Z(f"v_lshl_add_u32 v{k+2}, v{k}, 5, v{k+2}"); Z(f"v_lshl_add_u32 v{k+2}, v{k+1}, 7, v{k+2}")
                Z(f"v_xor_b32 v{k+3}, 32, v{k+2}")
                for s2 in range(2):
                    for T_ in range(2):
                        for h in range(2): Z(f"ds_read_b64_tr_b16 {vr(Wo + 8*s2 + 4*T_ + 2*h, 2)}, v{k+2+T_} offset:{s2*4096 + h*512}")
            Z("s_waitcnt lgkmcnt(0)")
            if tau == 0:
                Z(f"s_lshl_b32 s7, s6, 2"); Z(f"s_add_u32 s7, s7, {L_CONS}"); Z(f"v_mov_b32 v{M}, s7"); Z(f"v_mov_b32 v{M+1}, 3"); Z(f"ds_write_b32 v{M}, v{M+1}")
            if stamps: Z(f"s_memrealtime s[{64+2*(sb+5)}:{65+2*(sb+5)}]")
            if fr:
                Z(f"L_P6d_{sfx}:")
                for i in range(o.frd):
                    nanchk(z)
                    Z(f"s_cbranch_vccz L_P6e_{sfx}")
                    if i == 0: cnt(z, 3 * tau + 2); p6_loads(z)
                    Z("s_sleep 1")
                Z(f"s_sub_u32 {sBud}, {sBud}, 1"); Z(f"s_cbranch_scc0 L_P6d_{sfx}"); Z("s_endpgm")
                Z(f"L_P6e_{sfx}:")
                if tau == 0 and o.hold: Z(f"v_mov_b32 v{M+1}, 4"); Z(f"ds_write_b32 v{M}, v{M+1}")
                Z(f"v_max_f32_dpp v{M}, v{ML}, v{ML} {OCT[0]} {DPPM}")
                if nt == 4:
                    for T_ in range(2): Z(f"v_mfma_f32_16x16x32_bf16 {vr(DD+4*T_,4)}, {vr(t,4)}, {vr(Wo+4*T_,4)}, 0")
                Z(f"s_branch L_P6x_{sfx}")
            else:
                Z(f"s_branch L_P6w_{sfx}")
            B(f"L_P6w_{sfx}:")
            B(f"s_waitcnt vmcnt({nt//2})")
            B(f"v_max_f32_dpp v{M}, v{ML}, v{ML} {OCT[0]} {DPPM}")
            if nt == 4:
                B("s_waitcnt vmcnt(1)")
                for T_ in range(2): B(f"v_mfma_f32_16x16x32_bf16 {vr(DD+4*T_,4)}, {vr(t,4)}, {vr(Wo+4*T_,4)}, 0")
            B("s_waitcnt vmcnt(0)")
            B(f"L_P6x_{sfx}:")
            fl = [f"v_max_f32_dpp v{M}, v{M}, v{M} {OCT[1]} {DPPM}", f"v_max_f32_dpp v{M}, v{M}, v{M} {OCT[2]} {DPPM}",
                  f"v_sub_f32 v{ee}, v{ML}, v{M}", f"v_exp_f32 v{ee}, v{ee}"]
            for T_ in range(2):
                if nt == 2: B(f"v_mfma_f32_16x16x32_bf16 {vr(DD+4*T_,4)}, {vr(t,4)}, {vr(Wo+4*T_,4)}, 0")
                else: B(f"v_mfma_f32_16x16x32_bf16 {vr(DD+4*T_,4)}, {vr(t+4,4)}, {vr(Wo+8+4*T_,4)}, {vr(DD+4*T_,4)}")
                B(fl.pop(0))
            while fl: B(fl.pop(0))
            B(f"v_mul_f32 v{ls}, v{ML+1}, v{ee}")
            fl = [f"v_add_f32_dpp v{ls}, v{ls}, v{ls} {oc} {DPPM}" for oc in OCT] + [f"v_rcp_f32 v{ls}, v{ls}"]
            for r_ in range(4):
                for T_ in range(2):
                    op = "v_mul_f32_dpp" if r_ == 0 else "v_fmac_f32_dpp"
                    B(f"{op} v{M+T_}, v{ee}, v{DD+4*T_+r_} row_newbcast:{r_} {DPPM}")
                B(fl.pop(0))
            B(f"v_permlane16_swap_b32 v{M}, v{M+1}")
            B(f"v_add_f32 v{M}, v{M}, v{M+1}")
            B(f"v_mul_f32 v{M}, v{M}, v{ls}")
            B(f"ds_write_b32 v{aRW}, v{M} offset:{E}")
            B(f"v_cmp_u_f32 vcc, v{M}, v{M}")
            if stamps:
                rty(main, "vccnz", f"L_P6r_{sfx}", sleep=o.sl6)
                stubs.append(f"L_P6r_{sfx}:"); cnt(stubs, 3 * tau + 2); p6_loads(stubs); stubs.append(f"s_branch L_P6w_{sfx}")
            else: rty(main, "vccnz", f"L_P6_{sfx}", sleep=o.sl6)
            if tau == 1:
                B(f"s_mul_i32 s7, {sPass}, s6"); B("s_cmp_gt_u32 s7, 1"); B(f"s_cbranch_scc1 L_P6f_{tau}")
            B(f"L_RD_{sfx}:")
            q = RD
            B(f"ds_read_b128 {vr(q,4)}, v{aRR} offset:{E}")
            if nt == 4: B(f"s_add_u32 s7, {sAPW[tau]}, {CST}")
            B("s_waitcnt lgkmcnt(0)")
            B(f"v_pk_add_f32 {vr(q,2)}, {vr(q,2)}, {vr(q+2,2)}")
            if nt == 2:
                B(f"v_add_f32 v{q+2}, v{q}, v{q+1}")
                B(f"v_add_f32 v{q}, v{q}, v{q+1}")
                B(f"v_permlane32_swap_b32 v{q}, v{q+2}")
                B(f"v_add_f32 v{q}, v{q}, v{q+2}")
            else:
                B(f"v_add_f32 v{q}, v{q}, v{q+1}")
            B(f"v_cmp_u_f32 vcc, v{q}, v{q}")
            B(f"v_mov_b32_sdwa v{q}, v{vTag} dst_sel:BYTE_0 dst_unused:UNUSED_PRESERVE src0_sel:BYTE_2")
            rty(main, "vccnz", f"L_RD_{sfx}")
            B(f"buffer_store_dword v{q}, v{aAS}, {WS}, {sAPW[tau]} offen sc1")
            if nt == 4:
                B(f"buffer_store_dword v{q}, v{aAS}, {WS}, s7 offen sc1")
                B(f"s_branch L_P6f_{tau}")
                cold.extend(main)
            cold.extend(z)
            cold.extend(stubs)
        A(f"L_P6f_{tau}:")
        stamp(sb + 6)
    A(f"s_cmp_eq_u32 {sPass}, 0"); A("s_cbranch_scc0 L_final")
    A(f"s_mov_b32 {sPass}, 1")
    A(f"v_and_b32 v{M}, 3, v0"); A(f"v_mov_b32 v{M+1}, {OOBV}"); A(f"v_cmp_eq_u32 vcc, 1, v{M}"); A(f"v_cndmask_b32 v{aQS}, v{aQS}, v{M+1}, vcc")
    A(f"s_add_u32 {sRED}, {sRED}, {2*EXL}")
    for a in (aXW, aX, aQW, aQR, aPW, aMW, aPR, aPR + 1, aPR + 2, aPR + 3, aMR, aCK, aRW):
        A(f"v_add_u32 v{a}, {2*EXL}, v{a}")
    if stamps:
        A("s_waitcnt lgkmcnt(0)")
        for i in range(16): A(f"v_writelane_b32 v{vST}, s{64+2*i}, {i}")
        for i, c in enumerate(CNT): A(f"v_writelane_b32 v{vCN}, {c}, {i}"); A(f"s_mov_b32 {c}, 0")
    A("s_branch L_P1_0")
    A("L_final:")
    A("s_cmp_lt_u32 s59, 8"); A("s_cbranch_scc0 L_fin_done")
    A("s_cmp_lt_u32 s6, 5"); A("s_cbranch_scc0 L_fin_ep")
    A("L_PF:")
    p1_loads(t, L, 1)
    p1_core(t, "L_PF", 0, 0)
    A(f"buffer_store_short v{t+1}, v{aOUT}, s[52:55], 0 offen")
    A("s_branch L_fin_done")
    A("L_fin_ep:")
    A("s_lshl_b32 s7, s59, 3"); A("s_add_u32 s7, s7, s6"); A("s_cmp_eq_u32 s7, 7"); A("s_cbranch_scc0 L_fin_done")
    A(f"v_mov_b32 v{M}, {sW}")
    A("s_mov_b64 exec, 1")
    A(f"buffer_store_dword v{M}, v{aL16}, {WS}, 0 offen sc1")
    A("s_mov_b64 exec, -1")
    A("L_fin_done:")
    if stamps:
        stamp(1)
        A("s_waitcnt vmcnt(0)")
        stamp(0)
        A("s_waitcnt lgkmcnt(0)")
        for i in range(2, 16): A(f"v_writelane_b32 v{vST}, s{64+2*i}, {14 + i}")
        A(f"v_writelane_b32 v{vST}, s66, 30"); A(f"v_writelane_b32 v{vST}, s64, 31")
        for i, c in enumerate(CNT): A(f"v_writelane_b32 v{vCN}, {c}, {6 + i}")
        A(f"v_mov_b32 v3, v{vCN}")
        A("s_branch L_stamps2")
        A("L_stamps:")
        A("v_mov_b32 v3, 0")
        A("L_stamps2:")
        A("s_mov_b64 s[8:9], s[40:41]"); A("s_mov_b32 s10, 268435456"); A("s_mov_b32 s11, 0x20000")
        A("s_mul_i32 s7, s2, 10"); A("s_add_u32 s7, s7, s3"); A("s_lshl_b32 s7, s7, 8"); A(f"s_add_u32 s7, s7, {128 << 20}")
        A("v_lshlrev_b32 v1, 3, v0")
        A(f"v_mov_b32 v2, v{vST}")
        A("s_mov_b32 exec_lo, -1"); A("s_mov_b32 exec_hi, 0")
        A("buffer_store_dwordx2 v[2:3], v1, s[8:11], s7 offen")
    A("L_end:")
    A("s_endpgm")
    L += cold
    body = finalize(L)
    out = [HDR.rstrip("\n"), f"; @launch grid=(256,1,1) block=(640,1,1) lds={LDS_TOTAL}",
           '.amdgcn_target "amdgcn-amd-amdhsa--gfx950"', ".text", f".globl {NAME}_kernel", ".p2align 8", f".type {NAME}_kernel,@function"]
    out += [(l if l.endswith(":") else "    " + l) for l in body]
    out += ['.section .rodata,"a"', ".p2align 6", f".amdhsa_kernel {NAME}_kernel", "  .amdhsa_next_free_vgpr 168", "  .amdhsa_next_free_sgpr 102",
            "  .amdhsa_accum_offset 168", "  .amdhsa_group_segment_fixed_size 0", "  .amdhsa_kernarg_size 104", "  .amdhsa_user_sgpr_count 2",
            "  .amdhsa_user_sgpr_kernarg_segment_ptr 1", "  .amdhsa_system_sgpr_workgroup_id_x 1", ".end_amdhsa_kernel"]
    return "\n".join(out) + "\n"

if __name__ == "__main__":
    ap = argparse.ArgumentParser()
    ap.add_argument("out")
    for k, d in OPTS.items(): ap.add_argument("--" + k, type=int, default=d)
    a = ap.parse_args()
    if a.T64 == 20: a.T64 = a.T
    open(a.out, "w").write(gen(a))
```
